```python
import torch

def _softmax(x, axis=-1):
    return torch.softmax(x, dim=axis)
def _gelu(x):
    return torch.nn.functional.gelu(x, approximate="tanh")
def _silu(x):
    return torch.nn.functional.silu(x)
def _sigmoid(x):
    return torch.sigmoid(x)
def _layernorm(x, axis=-1, eps=1e-5):
    m = x.mean(dim=axis, keepdim=True)
    v = x.var(dim=axis, keepdim=True, unbiased=False)
    return (x - m) / torch.sqrt(v + eps)
def _scatter_add(tgt, idx, src, axis=0):
    return tgt.clone().index_add_(axis, idx, src)
def _segment_sum(src, seg, n):
    out = torch.zeros((n,) + src.shape[1:], dtype=src.dtype)
    return out.index_add_(0, seg, src)
def _pad(x, pw):
    flat = tuple(v for pair in reversed(pw) for v in pair)
    return torch.nn.functional.pad(x, flat)

kernel_name = 'standalone__linear_kernel_rfa__prompt'

def setup_inputs():

    _w = (lambda a: (lambda t: t.to(torch.bfloat16) if t.is_floating_point() else t)(torch.as_tensor(a)))
    B, H, Sq, Sk, D, M = 1, 32, 2048, 2048, 128, 64
    return {
        "q": _w((lambda *s: torch.randn(*s, dtype=torch.bfloat16) * 0.05)(B, H, Sq, D)),
        "k": _w((lambda *s: torch.randn(*s, dtype=torch.bfloat16) * 0.8)(B, H, Sk, D)),
        "v": _w((lambda *s: torch.randn(*s, dtype=torch.bfloat16) * 0.8)(B, H, Sk, D)),
        "omega": _w((lambda *s: torch.randn(*s, dtype=torch.bfloat16) * 0.8)(M, D)),
    }

def reference(q, k, v, omega):
    d = q.shape[-1]
    m = omega.shape[0]
    scale = float(d) ** -0.25
    qs = q * scale
    ks = k * scale
    q_proj = torch.einsum("bhsd,md->bhsm", qs, omega)
    k_proj = torch.einsum("bhsd,md->bhsm", ks, omega)
    q_sq = 0.5 * torch.einsum("bhsd,bhsd->bhs", qs, qs)[..., None]
    k_sq = 0.5 * torch.einsum("bhsd,bhsd->bhs", ks, ks)[..., None]
    inv_sqrt_m = float(m) ** -0.5
    phi_q = torch.exp(q_proj - q_sq) * inv_sqrt_m + 1e-6
    phi_k = torch.exp(k_proj - k_sq) * inv_sqrt_m + 1e-6
    kv = torch.einsum("bhsm,bhsd->bhmd", phi_k, v)
    z  = torch.einsum("bhsm->bhm", phi_k)
    num = torch.einsum("bhqm,bhmd->bhqd", phi_q, kv)
    den = torch.einsum("bhqm,bhm->bhq", phi_q, z)[..., None] + 1e-6
    return num / den
```

```python
import re

TRANS = ('v_exp_f32', 'v_log_f32', 'v_rcp_f32', 'v_rsq_f32', 'v_sqrt_f32', 'v_sin_f32', 'v_cos_f32')


def _regs(tok):
    tok = tok.strip()
    tok = tok.lstrip('-')
    m = re.match(r'^abs\((.*)\)$', tok)
    if m:
        tok = m.group(1)
    m = re.match(r'^\|(.*)\|$', tok)
    if m:
        tok = m.group(1)
    m = re.match(r'^([vsa])(\d+)$', tok)
    if m:
        return [(m.group(1), int(m.group(2)))]
    m = re.match(r'^([vsa])\[(\d+):(\d+)\]$', tok)
    if m:
        return [(m.group(1), i) for i in range(int(m.group(2)), int(m.group(3)) + 1)]
    if tok in ('vcc', 'exec', 'm0', 'scc', 'vcc_lo', 'vcc_hi', 'exec_lo', 'exec_hi'):
        if tok.startswith('vcc'):
            return [('x', 'vcc')]
        if tok.startswith('exec'):
            return [('x', 'exec')]
        return [('x', tok)]
    return []


class Ins:
    __slots__ = ('text', 'mn', 'ops', 'mods', 'w', 'r', 'cls', 'passes', 'srcc', 'srcab', 'data')

    def __init__(self, text):
        self.text = text
        body = text.split(';')[0].strip()
        parts = body.split(None, 1)
        self.mn = parts[0]
        rest = parts[1] if len(parts) > 1 else ''
        ops = []
        cur = ''
        depth = 0
        for ch in rest:
            if ch in '[(':
                depth += 1
            if ch in '])':
                depth -= 1
            if ch == ',' and depth == 0:
                ops.append(cur.strip())
                cur = ''
            else:
                cur += ch
        if cur.strip():
            ops.append(cur.strip())
        mods = []
        if ops:
            last = ops[-1].split()
            ops[-1] = last[0]
            mods = last[1:]
        self.ops = ops
        self.mods = mods
        self.w = set()
        self.r = set()
        self.srcc = set()
        self.srcab = set()
        self.data = set()
        self.passes = 0
        mn = self.mn
        R = lambda i: set(_regs(ops[i])) if i < len(ops) else set()
        allr = lambda a: set().union(*[R(i) for i in range(a, len(ops))]) if len(ops) > a else set()
        if mn.startswith('v_mfma'):
            self.cls = 'mfma'
            self.w = R(0)
            self.srcab = R(1) | R(2)
            self.srcc = R(3)
            self.r = self.srcab | self.srcc
            self.passes = 8 if '32x32' in mn else 4
        elif mn.startswith('v_cmp'):
            self.cls = 'valu'
            self.w = R(0)
            self.r = allr(1)
        elif mn.startswith('v_readfirstlane') or mn.startswith('v_readlane'):
            self.cls = 'valu'
            self.w = R(0)
            self.r = allr(1)
        elif mn.startswith('v_permlane'):
            self.cls = 'valu'
            self.w = R(0) | R(1)
            self.r = R(0) | R(1)
        elif mn.startswith('v_dot2c') or mn.startswith('v_fmac'):
            self.cls = 'dot' if mn.startswith('v_dot') else 'valu'
            self.w = R(0)
            self.r = allr(0)
            self.srcc = R(0)
            self.srcab = allr(1)
        elif mn.startswith('v_dot'):
            self.cls = 'dot'
            self.w = R(0)
            self.r = allr(1)
            self.srcc = R(3)
            self.srcab = R(1) | R(2)
        elif mn.startswith('v_'):
            self.cls = 'trans' if mn.replace('_e32', '').replace('_e64', '') in TRANS else 'valu'
            self.w = R(0)
            self.r = allr(1)
            if mn.startswith('v_cndmask') and len(ops) == 3:
                self.r |= {('x', 'vcc')}
        elif mn.startswith('ds_read') or mn.startswith('ds_bpermute') or mn.startswith('ds_add_rtn') or mn.startswith('ds_swizzle'):
            self.cls = 'ds'
            self.w = R(0)
            self.r = allr(1)
        elif mn.startswith('ds_'):
            self.cls = 'ds'
            self.r = allr(0)
        elif mn.startswith('buffer_load') or mn.startswith('global_load'):
            self.cls = 'vmem'
            if 'lds' in mods or '_lds_' in mn:
                self.r = allr(0) | {('x', 'm0')}
            else:
                self.w = R(0)
                self.r = allr(1)
        elif mn.startswith('buffer_store') or mn.startswith('global_store'):
            self.cls = 'vmem'
            self.r = allr(0)
            if 'x4' in mn or 'x3' in mn:
                self.data = R(0) if mn.startswith('buffer') else R(1)
        elif mn.startswith('buffer_atomic'):
            self.cls = 'vmem'
            self.r = allr(0)
            if 'sc0' in mods:
                self.w = set(list(sorted(R(0)))[:1]) if 'cmpswap' in mn else R(0)
        elif mn.startswith('buffer_inv') or mn.startswith('buffer_wbl2'):
            self.cls = 'vmem'
        elif mn.startswith('s_load') or mn.startswith('s_memtime') or mn.startswith('s_memrealtime'):
            self.cls = 'smem'
            self.w = R(0)
            self.r = allr(1)
        elif mn in ('s_nop', 's_waitcnt', 's_barrier', 's_sleep', 's_setprio', 's_endpgm', 's_branch') or mn.startswith('s_cbranch'):
            self.cls = 'ctl'
        elif mn.startswith('s_cmp') or mn.startswith('s_bitcmp'):
            self.cls = 'salu'
            self.r = allr(0)
            self.w = {('x', 'scc')}
        elif mn.startswith('s_'):
            self.cls = 'salu'
            self.w = R(0)
            self.r = allr(1)
            if 'saveexec' in mn:
                self.w |= {('x', 'exec')}
        else:
            raise ValueError('unknown instruction ' + text)

    def is_dpp(self):
        return self.mn.endswith('_dpp') or any(m.startswith(('row_', 'quad_perm', 'wave_')) for m in self.mods)

    def is_sdwa(self):
        return self.mn.endswith('_sdwa')


def need_ws(p, c):
    n = 0
    pv = p.cls in ('valu', 'trans', 'dot')
    cv = c.cls in ('valu', 'trans', 'dot')
    vw = {x for x in p.w if x[0] in 'va'}
    sw = {x for x in p.w if x[0] in 'sx'}
    if pv:
        if c.cls == 'mfma' and (vw & c.r):
            n = max(n, 2 if p.cls != 'dot' else 3)
        if p.cls == 'trans' and (vw & c.r) and c.cls != 'trans':
            n = max(n, 1)
        if p.cls == 'trans' and (vw & c.r) and c.cls == 'trans':
            n = max(n, 1)
        if sw & c.r:
            if c.cls == 'vmem':
                n = max(n, 5)
            elif cv:
                n = max(n, 4 if c.mn.startswith(('v_readlane', 'v_writelane')) else 2)
            elif c.cls == 'salu':
                n = max(n, 1)
        if (vw & c.r):
            if c.mn.startswith(('v_readfirstlane', 'v_readlane')):
                n = max(n, 1)
            if c.mn.startswith('v_permlane') or c.is_dpp():
                n = max(n, 2)
            if p.is_sdwa():
                n = max(n, 1)
        if p.cls == 'dot':
            if c.cls == 'dot' and c.mn == p.mn:
                if vw & c.srcab:
                    n = max(n, 3)
            elif vw & (c.r | c.w):
                n = max(n, 3)
        if ('x', 'exec') in p.w:
            n = max(n, 5)
    if p.cls == 'mfma':
        P = p.passes
        if c.cls == 'mfma':
            if p.w & c.srcab:
                n = max(n, P + 4)
            if p.w & c.srcc:
                if not (c.srcc == p.w and c.passes == p.passes):
                    n = max(n, P + 2)
            elif p.w & c.w:
                n = max(n, P + 2)
        else:
            if p.w & (c.r | c.w):
                n = max(n, P + 4)
        if cv and (p.srcc & c.w):
            n = max(n, P - 1)
    if p.cls == 'salu' and ('x', 'm0') in p.w and ('x', 'm0') in c.r:
        n = max(n, 1)
    if p.cls == 'vmem' and p.data and (p.data & c.w):
        n = max(n, 2 if cv else 1)
    return n


class Asm:
    def __init__(self):
        self.out = []
        self.hist = []
        self.pos = 0
        self.vm = []
        self.lg = []
        self.smem = set()
        self.smem_pending = False
        self.auto = True

    def raw(self, text):
        self.out.append(text)

    def comment(self, text):
        self.out.append('    ; ' + text)

    def _nop(self, n):
        while n > 0:
            k = min(n, 16)
            self.out.append('    s_nop %d' % (k - 1))
            self.pos += k
            n -= k

    def flush_hazards(self, n=16):
        if self.hist:
            need = 0
            for p, pp in self.hist[-24:]:
                worst = 0
                if p.cls == 'mfma':
                    worst = p.passes + 4
                elif p.cls in ('valu', 'trans', 'dot'):
                    worst = 5 if any(x[0] in 'sx' for x in p.w) else 3
                elif p.cls == 'salu' and ('x', 'm0') in p.w:
                    worst = 1
                elif p.cls == 'vmem' and p.data:
                    worst = 2
                need = max(need, worst - (self.pos - pp - 1))
            if need > 0:
                self._nop(need)
        self.hist = []

    def label(self, name, reset=True):
        self.flush_hazards()
        self.out.append(name + ':')

    def reset_counters(self):
        self.vm = []
        self.lg = []
        self.smem = set()
        self.smem_pending = False

    def waitcnt(self, vm=None, lg=None):
        s = []
        if vm is not None:
            vm = min(vm, 62)
            s.append('vmcnt(%d)' % vm)
            if len(self.vm) > vm:
                self.vm = self.vm[len(self.vm) - vm:] if vm else []
        if lg is not None:
            lg = min(lg, 14)
            s.append('lgkmcnt(%d)' % lg)
            if len(self.lg) > lg:
                self.lg = self.lg[len(self.lg) - lg:] if lg else []
            if lg == 0:
                self.smem = set()
                self.smem_pending = False
        self.out.append('    s_waitcnt ' + ' '.join(s))
        self.pos += 1

    def __call__(self, text):
        for line in text.strip().split('\n'):
            line = line.strip()
            if not line or line.startswith(';'):
                continue
            self.emit(line)

    def emit(self, text):
        ins = Ins(text)
        if ins.mn == 's_waitcnt':
            vm = re.search(r'vmcnt\((\d+)\)', text)
            lg = re.search(r'lgkmcnt\((\d+)\)', text)
            self.waitcnt(int(vm.group(1)) if vm else None, int(lg.group(1)) if lg else None)
            return
        touched = ins.r | ins.w
        needvm = None
        for i, d in enumerate(self.vm):
            if d & touched:
                needvm = len(self.vm) - 1 - i
        needlg = None
        for i, d in enumerate(self.lg):
            if d & touched:
                needlg = len(self.lg) - 1 - i
        if self.smem & touched:
            needlg = 0
        if needlg is not None and self.smem_pending:
            needlg = 0
        if needvm is not None or needlg is not None:
            self.waitcnt(needvm, needlg)
        need = 0
        for p, pp in self.hist[-24:]:
            w = need_ws(p, ins)
            if w:
                have = self.pos - pp - 1
                need = max(need, w - have)
        if need > 0:
            self._nop(need)
        if ins.mn == 's_nop':
            self.out.append('    ' + text)
            self.pos += int(ins.ops[0]) + 1
            return
        if ins.mn.startswith('s_cbranch') or ins.mn == 's_branch':
            self.flush_hazards()
        self.out.append('    ' + text)
        self.hist.append((ins, self.pos))
        self.pos += 1
        if ins.cls == 'vmem':
            self.vm.append(set(ins.w))
            if len(self.vm) > 63:
                raise RuntimeError('too many vmem outstanding')
        elif ins.cls == 'ds':
            self.lg.append(set(ins.w))
        elif ins.cls == 'smem':
            self.smem |= set(ins.w)
            self.smem_pending = True

    def text(self):
        return '\n'.join(self.out) + '\n'
```

```python
import struct, sys, math
from asmdsl import Asm

NAME = 'standalone__linear_kernel_rfa__prompt'


def fh(x):
    return '0x%08x' % struct.unpack('<I', struct.pack('<f', x))[0]


SCALE = 128.0 ** -0.25
LOG2E = 1.4426950408889634
C1 = SCALE * LOG2E

HEADER = """; Kernarg layout for this problem (56 bytes, ptrs only, base s[0:1]):
; @launch grid=(256,1,1) block=(512,1,1) lds=%d
.amdgcn_target "amdgcn-amd-amdhsa--gfx950"
.text
.globl %s_kernel
.p2align 8
.type %s_kernel,@function
%s_kernel:
"""

FOOTER = """
.section .rodata,"a"
.p2align 6
.amdhsa_kernel %s_kernel
  .amdhsa_next_free_vgpr 256
  .amdhsa_next_free_sgpr 96
  .amdhsa_accum_offset 256
  .amdhsa_group_segment_fixed_size 0
  .amdhsa_kernarg_size 56
  .amdhsa_user_sgpr_count 2
  .amdhsa_user_sgpr_kernarg_segment_ptr 1
  .amdhsa_system_sgpr_workgroup_id_x 1
.end_amdhsa_kernel
"""


def vr(a, n=4):
    return 'v[%d:%d]' % (a, a + n - 1)


def gen(depth=6, stamps=False, ntkv=False, ntq=False, nto=False):
    a = Asm()
    LDS_CNT = 131072
    LDS_FLAG = 131072 + 64
    LDS_TOTAL = 131072 + 256
    PART_W = 5120
    PART = 4 * PART_W
    KS_STRIDE = 9216
    sK, sV, sQ, sO, sOM, sWS, sDBG, sST = 's[24:27]', 's[28:31]', 's[32:35]', 's[36:39]', 's[40:43]', 's[44:47]', 's[48:51]', 's[52:55]'
    sL, sOFF, sHEAD, sCHUNK, sWAVE = 's18', 's19', 's20', 's21', 's22'
    sT, sT2, sW2 = 's56', 's57', 's58'
    sC1, sHS, sQB, sSEL, sLO, sHI, sSPIN = 's60', 's61', 's62', 's63', 's64', 's65', 's66'
    ntkv_s = ' nt' if ntkv else ''
    ntq_s = ' nt' if ntq else ''
    nto_s = ' nt' if nto else ''

    nstamp = [0]

    def stamp(idx):
        if stamps:
            a('s_memtime s[%d:%d]' % (70 + 2 * idx, 71 + 2 * idx))

    def stamp_flush(n):
        if stamps:
            a('s_waitcnt lgkmcnt(0)')
            a('s_lshl_b32 s68, %s, 3' % sL)
            a('s_add_u32 s68, s68, %s' % sWAVE)
            a('s_lshl_b32 s68, s68, 6')
            a('s_mov_b64 exec, 1')
            for i in range(n):
                a('v_mov_b32 v1, s%d' % (70 + 2 * i))
                a('v_mov_b32 v2, %d' % (4 * i))
                a('buffer_store_dword v1, v2, %s, s68 offen' % sST)
            a('s_mov_b64 exec, -1')

    a('s_cmp_ge_u32 s2, 256')
    a('s_cbranch_scc1 L_end')
    stamp(0)
    a('s_load_dwordx8 s[4:11], s[0:1], 0')
    a('s_load_dwordx4 s[12:15], s[0:1], 32')
    a('s_load_dwordx2 s[16:17], s[0:1], 48')
    a('s_and_b32 %s, s2, 7' % sL)
    a('s_lshl_b32 %s, %s, 5' % (sL, sL))
    a('s_lshr_b32 %s, s2, 3' % sOFF)
    a('s_add_u32 %s, %s, %s' % (sL, sL, sOFF))
    a('s_lshl_b32 %s, %s, 16' % (sOFF, sL))
    a('s_lshr_b32 %s, %s, 3' % (sHEAD, sL))
    a('s_and_b32 %s, %s, 7' % (sCHUNK, sL))
    a('v_lshrrev_b32 v1, 6, v0')
    a('v_and_b32 v0, 63, v0')
    a('v_readfirstlane_b32 %s, v1' % sWAVE)
    a('s_mov_b32 %s, %s' % (sC1, fh(C1)))
    a('s_mov_b32 %s, %s' % (sHS, fh(0.5 * SCALE)))
    a('s_mov_b32 %s, %s' % (sQB, fh(-0.5 * SCALE * C1)))
    a('s_mov_b32 %s, 0x07060302' % sSEL)
    a('s_mov_b32 %s, 0x00003f80' % sLO)
    a('s_mov_b32 %s, 0x3f800000' % sHI)
    a('s_waitcnt lgkmcnt(0)')

    def srd(base, lo, hi, off, nbytes):
        if off is None:
            a('s_mov_b32 s%d, s%d' % (base, lo))
            a('s_mov_b32 s%d, s%d' % (base + 1, hi))
        else:
            a('s_add_u32 s%d, s%d, %s' % (base, lo, off))
            a('s_addc_u32 s%d, s%d, 0' % (base + 1, hi))
        a('s_mov_b32 s%d, 0x%x' % (base + 2, nbytes))
        a('s_mov_b32 s%d, 0x00020000' % (base + 3))

    srd(24, 6, 7, sOFF, 65536)
    srd(28, 8, 9, sOFF, 65536)
    srd(32, 4, 5, sOFF, 65536)
    srd(36, 12, 13, sOFF, 65536)
    srd(40, 10, 11, None, 16384)
    a('s_mul_i32 %s, %s, %d' % (sT, sHEAD, 8 * PART))
    srd(44, 16, 17, sT, 8 * PART)
    srd(48, 14, 15, None, 256)
    if stamps:
        a('s_mov_b32 %s, 0x4000000' % sT)
        srd(52, 16, 17, sT, 256 * 8 * 64)
    a('v_and_b32 v1, 15, v0')
    a('v_lshrrev_b32 v2, 4, v0')
    a('s_cmp_ge_u32 %s, 4' % sWAVE)
    a('s_cbranch_scc1 L_qwave')

    a.reset_counters()
    aK, aV, vXa, vXz, voffP, vC = 16, 20, 28, 29, 30, 31
    OMB, ONES, NEG1, SQ, KF, VF, D1, PA, DACC, TMP = 32, 48, 52, 56, 64, 96, 128, 136, 140, 144
    P, ACC2, LD = 192, 220, 32
    vHead = 210
    a('v_lshlrev_b32 v3, 8, v1')
    a('v_lshl_add_u32 v3, v2, 4, v3')
    a('s_lshl_b32 %s, %s, 12' % (sT, sWAVE))
    for kk in range(4):
        a('buffer_load_dwordx4 %s, v3, %s, %s offen offset:%d' % (vr(OMB + 4 * kk), sOM, sT, kk * 64))
    a('v_mov_b32 v4, %d' % LDS_CNT)
    a('v_mov_b32 v5, 0')
    a('ds_write_b32 v4, v5')
    a('ds_write_b32 v4, v5 offset:64')
    for kk in range(4):
        a('v_add_u32 v4, %d, v2' % (4 * kk))
        a('v_xor_b32 v4, v4, v1')
        a('v_lshlrev_b32 v4, 4, v4')
        a('v_lshl_add_u32 v%d, v1, 8, v4' % (aK + kk))
    a('v_lshrrev_b32 v4, 2, v0')
    a('v_and_b32 v5, 7, v4')
    a('v_and_b32 v6, 3, v0')
    a('v_lshlrev_b32 v6, 3, v6')
    a('v_lshl_add_u32 v6, v4, 8, v6')
    for b in range(8):
        a('v_xor_b32 v7, %d, v5' % b)
        a('v_lshl_add_u32 v%d, v7, 5, v6' % (aV + b))
    a('v_bfe_u32 v4, v1, 2, 1')
    a('v_lshlrev_b32 v4, 10, v4')
    a('v_lshl_add_u32 v4, v2, 8, v4')
    a('v_lshrrev_b32 v5, 3, v1')
    a('v_lshl_add_u32 v4, v5, 6, v4')
    a('v_and_b32 v5, 3, v1')
    a('v_lshl_add_u32 v4, v5, 4, v4')
    a('s_and_b32 %s, %s, 1' % (sT2, sWAVE))
    a('s_lshl_b32 %s, %s, 3' % (sT2, sT2))
    a('s_lshr_b32 %s, %s, 1' % (sW2, sWAVE))
    a('s_mul_i32 %s, %s, %d' % (sW2, sW2, KS_STRIDE))
    a('s_add_u32 %s, %s, %s' % (sT2, sT2, sW2))
    a('v_add_u32 v%d, %s, v4' % (vXa, sT2))
    a('v_lshlrev_b32 v%d, 4, v0' % voffP)
    a('v_add_u32 v%d, %s, v%d' % (vXz, sT2, voffP))
    a('v_mov_b32 v%d, %s' % (vC, fh(1e-6)))
    a('s_lshl_b32 %s, %s, 2' % (sT2, sHEAD))
    a('v_mov_b32 v%d, %s' % (vHead, sT2))
    for i in range(4):
        a('v_mov_b32 v%d, 0x3f803f80' % (ONES + i))
        a('v_mov_b32 v%d, 0xbf80bf80' % (NEG1 + i))
    for t in range(2):
        a('v_mov_b32 v%d, 0' % (SQ + 4 * t + 2))
        a('v_mov_b32 v%d, 0' % (SQ + 4 * t + 3))
    for i in range(36):
        a('v_mov_b32 v%d, 0' % (ACC2 + i))
    a('s_waitcnt lgkmcnt(0)')

    for st in range(8):
        if st == 4:
            for r in list(range(aK, aK + 4)) + list(range(aV, aV + 8)):
                a('v_add_u32 v%d, 0x10000, v%d' % (r, r))
        base = (st % 4) * 16384
        a('s_barrier')
        if st == 0:
            stamp(1)
        if st == 7:
            stamp(2)
        for t in range(2):
            for kk in range(4):
                a('ds_read_b128 %s, v%d offset:%d' % (vr(KF + 16 * t + 4 * kk), aK + kk, base + t * 4096))
        for b in range(4):
            for u in range(2):
                a('ds_read_b64_tr_b16 %s, v%d offset:%d' % (vr(VF + 4 * b + 2 * u, 2), aV + b, base + 8192 + u * 4096))
        for t in range(2):
            for kk in range(4):
                c = '0' if kk == 0 else vr(D1 + 4 * t)
                a('v_mfma_f32_16x16x32_bf16 %s, %s, %s, %s' % (vr(D1 + 4 * t), vr(KF + 16 * t + 4 * kk), vr(OMB + 4 * kk), c))
                for x in range(4):
                    r = KF + 16 * t + 4 * kk + x
                    acc = DACC + 2 * t + (x & 1)
                    c = '0' if (kk == 0 and x < 2) else 'v%d' % acc
                    a('v_dot2_f32_bf16 v%d, v%d, v%d, %s' % (acc, r, r, c))
            if t == 0:
                for b in range(4, 8):
                    for u in range(2):
                        a('ds_read_b64_tr_b16 %s, v%d offset:%d' % (vr(VF + 4 * b + 2 * u, 2), aV + b, base + 8192 + u * 4096))
        for t in range(2):
            T = TMP + 4 * t
            a('v_add_f32 v%d, v%d, v%d' % (T, DACC + 2 * t, DACC + 2 * t + 1))
        for t in range(2):
            T = TMP + 4 * t
            a('v_mul_f32 v%d, %s, v%d' % (T, sHS, T))
        for t in range(2):
            T = TMP + 4 * t
            a('v_and_b32 v%d, 0xffff0000, v%d' % (T + 1, T))
        for t in range(2):
            T = TMP + 4 * t
            a('v_sub_f32 v%d, v%d, v%d' % (T + 1, T, T + 1))
        for t in range(2):
            T = TMP + 4 * t
            a('v_and_b32 v%d, 0xffff0000, v%d' % (T + 2, T + 1))
        for t in range(2):
            T = TMP + 4 * t
            a('v_sub_f32 v%d, v%d, v%d' % (T + 2, T + 1, T + 2))
        for t in range(2):
            T = TMP + 4 * t
            a('v_perm_b32 v%d, v%d, v%d, %s' % (SQ + 4 * t, T + 1, T, sSEL))
            a('v_lshrrev_b32 v%d, 16, v%d' % (SQ + 4 * t + 1, T + 2))
        for t in range(2):
            a('v_mfma_f32_16x16x32_bf16 %s, %s, %s, %s' % (vr(D1 + 4 * t), vr(SQ + 4 * t), vr(NEG1), vr(D1 + 4 * t)))
        for i in range(8):
            a('v_mul_f32 v%d, %s, v%d' % (TMP + 8 + i, sC1, D1 + i))
        for i in range(8):
            a('v_exp_f32 v%d, v%d' % (TMP + 8 + i, TMP + 8 + i))
        for i in range(8):
            a('v_fmamk_f32 v%d, v%d, 0x3e000000, v%d' % (TMP + 8 + i, TMP + 8 + i, vC))
        for i in range(4):
            a('v_cvt_pk_bf16_f32 v%d, v%d, v%d' % (PA + i, TMP + 8 + 2 * i, TMP + 9 + 2 * i))
        a('v_mfma_f32_16x16x32_bf16 %s, %s, %s, %s' % (vr(ACC2 + 32), vr(PA), vr(ONES), vr(ACC2 + 32)))
        for b in range(8):
            a('v_mfma_f32_16x16x32_bf16 %s, %s, %s, %s' % (vr(ACC2 + 4 * b), vr(PA), vr(VF + 4 * b), vr(ACC2 + 4 * b)))

    a('s_mul_i32 %s, %s, %d' % (sW2, sWAVE, PART_W))
    a('s_mul_i32 %s, %s, %d' % (sT, sCHUNK, PART))
    a('s_add_u32 %s, %s, %s' % (sT, sT, sW2))
    a('s_add_u32 %s, %s, 4096' % (sT2, sT))
    a('buffer_store_dwordx4 %s, v%d, %s, %s offen sc1' % (vr(ACC2 + 32), voffP, sWS, sT2))
    for j in range(4):
        for b in (2 * j, 2 * j + 1):
            a('v_cvt_pk_bf16_f32 v%d, v%d, v%d' % (P + 2 * b, ACC2 + 4 * b, ACC2 + 4 * b + 1))
            a('v_cvt_pk_bf16_f32 v%d, v%d, v%d' % (P + 2 * b + 1, ACC2 + 4 * b + 2, ACC2 + 4 * b + 3))
        a('buffer_store_dwordx4 %s, v%d, %s, %s offen offset:%d sc1' % (vr(P + 4 * j), voffP, sWS, sT, j * 1024))
    stamp(3)
    a('v_mov_b32 v4, %d' % LDS_CNT)
    a('v_mov_b32 v5, 1')
    a('s_waitcnt vmcnt(0)')
    stamp(4)
    a('s_mov_b64 exec, 1')
    a('ds_add_rtn_u32 v6, v4, v5')
    a('s_waitcnt lgkmcnt(0)')
    a('v_readfirstlane_b32 %s, v6' % sT)
    a('s_cmp_eq_u32 %s, 3' % sT)
    a('s_cbranch_scc0 L_noflag')
    a('buffer_atomic_add v5, v%d, %s, 0 offen' % (vHead, sDBG))
    a.label('L_noflag')
    a('s_mov_b32 %s, 0x40000' % sSPIN)
    a('s_cmp_eq_u32 %s, 0' % sWAVE)
    a('s_cbranch_scc0 L_waitlds')
    a.label('L_poll')
    a('buffer_load_dword v6, v%d, %s, 0 offen sc1' % (vHead, sDBG))
    a('s_waitcnt vmcnt(0)')
    a('v_readfirstlane_b32 %s, v6' % sT)
    a('s_cmp_ge_u32 %s, 8' % sT)
    a('s_cbranch_scc1 L_polled')
    a('s_sleep 1')
    a('s_sub_u32 %s, %s, 1' % (sSPIN, sSPIN))
    a('s_cmp_lg_u32 %s, 0' % sSPIN)
    a('s_cbranch_scc1 L_poll')
    a.label('L_polled')
    a('ds_write_b32 v4, v5 offset:64')
    a('s_branch L_go')
    a.label('L_waitlds')
    a('ds_read_b32 v6, v4 offset:64')
    a('s_waitcnt lgkmcnt(0)')
    a('v_readfirstlane_b32 %s, v6' % sT)
    a('s_cmp_lg_u32 %s, 0' % sT)
    a('s_cbranch_scc1 L_go')
    a('s_sleep 1')
    a('s_sub_u32 %s, %s, 1' % (sSPIN, sSPIN))
    a('s_cmp_lg_u32 %s, 0' % sSPIN)
    a('s_cbranch_scc1 L_waitlds')
    a.label('L_go')
    a('s_waitcnt vmcnt(0) lgkmcnt(0)')
    a.reset_counters()
    stamp(5)
    a('s_mov_b64 exec, -1')
    for p in range(8):
        a('s_add_u32 %s, %s, %d' % (sT, sW2, p * PART))
        a('s_add_u32 %s, %s, %d' % (sT2, sW2, p * PART + 4096))
        for j in range(4):
            a('buffer_load_dwordx4 %s, v%d, %s, %s offen offset:%d sc1' % (vr(LD + 20 * p + 4 * j), voffP, sWS, sT, j * 1024))
        a('buffer_load_dwordx4 %s, v%d, %s, %s offen sc1' % (vr(LD + 20 * p + 16), voffP, sWS, sT2))
    for p in range(8):
        for x in range(16):
            src = LD + 20 * p + x
            for h, sel in ((0, sLO), (1, sHI)):
                acc = ACC2 + 2 * x + h
                c = '0' if p == 0 else 'v%d' % acc
                a('v_dot2_f32_bf16 v%d, v%d, %s, %s' % (acc, src, sel, c))
        for x in range(4):
            if p == 0:
                a('v_mov_b32 v%d, v%d' % (ACC2 + 32 + x, LD + 16 + x))
            else:
                a('v_add_f32 v%d, v%d, v%d' % (ACC2 + 32 + x, ACC2 + 32 + x, LD + 20 * p + 16 + x))
    stamp(6)
    for b in range(9):
        a('v_cvt_pk_bf16_f32 v%d, v%d, v%d' % (P + 2 * b, ACC2 + 4 * b, ACC2 + 4 * b + 1))
        a('v_cvt_pk_bf16_f32 v%d, v%d, v%d' % (P + 2 * b + 1, ACC2 + 4 * b + 2, ACC2 + 4 * b + 3))
        if b < 8:
            a('ds_write_b64 v%d, %s offset:%d' % (vXa, vr(P + 2 * b, 2), (b >> 1) * 2048 + (b & 1) * 128))
        else:
            a('ds_write_b64 v%d, %s offset:%d' % (vXz, vr(P + 16, 2), 8192))
    a('s_waitcnt lgkmcnt(0)')
    a('s_barrier')
    stamp(7)
    stamp_flush(8)
    a('s_endpgm')

    a.label('L_qwave')
    a.reset_counters()
    vK0, vK1, vV0, vV1, vQ, vOM, vLA = 16, 17, 18, 19, 20, 21, 22
    OM, QF, PH, ACC3 = 32, 96, 160, 192
    KVA, ACC4, OUT = 32, (104, 192), (140, 228)
    sLW, sLWO = 's59', 's67'
    a('s_sub_u32 %s, %s, 4' % (sLW, sWAVE))
    a('s_lshl_b32 %s, %s, 11' % (sLWO, sLW))
    a('s_and_b32 %s, %s, 1' % (sT, sLW))
    a('s_lshl_b32 %s, %s, 3' % (sT, sT))
    a('v_lshlrev_b32 v3, 8, v2')
    a('v_add_u32 v3, %s, v3' % sLWO)
    for h in range(2):
        a('v_add_u32 v4, %s, v2' % sT)
        if h:
            a('v_add_u32 v4, 4, v4')
        a('v_xor_b32 v4, v4, v1')
        a('v_lshl_add_u32 v%d, v4, 4, v3' % (vK0 + h))
    for h in range(2):
        a('v_lshlrev_b32 v4, 1, v2')
        if h:
            a('v_add_u32 v4, 8, v4')
        a('v_xor_b32 v4, v4, v1')
        a('v_lshl_add_u32 v%d, v4, 4, v3' % (vV0 + h))
    a('v_lshlrev_b32 v%d, 8, v1' % vOM)
    a('v_lshl_add_u32 v%d, v2, 4, v%d' % (vOM, vOM))
    a('s_lshl_b32 %s, %s, 14' % (sT, sLW))
    a('v_add_u32 v%d, %s, v%d' % (vQ, sT, vOM))
    a('v_lshlrev_b32 v%d, 4, v0' % vLA)

    issued = [0]
    mark = {}

    def unit(u):
        if u < 8:
            a('s_mov_b32 %s, %d' % (sT, u * 8192))
            a('s_add_u32 m0, %s, %d' % (sLWO, u * 16384))
            a('buffer_load_dwordx4 v%d, %s, %s offen%s lds' % (vK0, sK, sT, ntkv_s))
            a('buffer_load_dwordx4 v%d, %s, %s offen offset:1024%s lds' % (vK1, sK, sT, ntkv_s))
            a('s_add_u32 m0, %s, %d' % (sLWO, u * 16384 + 8192))
            a('buffer_load_dwordx4 v%d, %s, %s offen%s lds' % (vV0, sV, sT, ntkv_s))
            a('buffer_load_dwordx4 v%d, %s, %s offen offset:1024%s lds' % (vV1, sV, sT, ntkv_s))
        elif u < 12:
            t = u - 8
            a('s_mov_b32 %s, %d' % (sT, t * 4096))
            for kk in range(4):
                a('buffer_load_dwordx4 %s, v%d, %s, %s offen offset:%d%s' % (vr(QF + 16 * t + 4 * kk), vQ, sQ, sT, kk * 64, ntq_s))
        else:
            return
        issued[0] += 4
        mark[u] = issued[0]

    for u in range(depth):
        unit(u)
    for mt in range(4):
        a('s_mov_b32 %s, %d' % (sT, mt * 4096))
        for kk in range(4):
            a('buffer_load_dwordx4 %s, v%d, %s, %s offen offset:%d' % (vr(OM + 16 * mt + 4 * kk), vOM, sOM, sT, kk * 64))
        issued[0] += 4
    for st in range(8):
        a('s_waitcnt vmcnt(%d)' % (issued[0] - mark[st]))
        a('s_barrier')
        unit(st + depth)
    for u in range(8 + depth, 12):
        unit(u)
    stamp(1)
    for t in range(4):
        A3 = ACC3 + 16 * (t & 1)
        for kk in range(4):
            for mt in range(4):
                c = '0' if kk == 0 else vr(A3 + 4 * mt)
                a('v_mfma_f32_16x16x32_bf16 %s, %s, %s, %s' % (vr(A3 + 4 * mt), vr(OM + 16 * mt + 4 * kk), vr(QF + 16 * t + 4 * kk), c))
                x = mt
                r = QF + 16 * t + 4 * kk + x
                acc = 4 + (x & 1)
                c = '0' if (kk == 0 and x < 2) else 'v%d' % acc
                a('v_dot2_f32_bf16 v%d, v%d, v%d, %s' % (acc, r, r, c))
        a('v_add_f32 v4, v4, v5')
        a('v_mov_b32 v5, v4')
        a('v_permlane16_swap_b32 v4, v5')
        a('v_add_f32 v4, v4, v5')
        a('v_mov_b32 v5, v4')
        a('v_permlane32_swap_b32 v4, v5')
        a('v_add_f32 v4, v4, v5')
        a('v_mov_b32 v6, %s' % fh(-3.0))
        a('v_fma_f32 v4, v4, %s, v6' % sQB)
        for i in range(16):
            a('v_fma_f32 v%d, v%d, %s, v4' % (A3 + i, A3 + i, sC1))
        for i in range(16):
            a('v_exp_f32 v%d, v%d' % (A3 + i, A3 + i))
        for i in range(16):
            a('v_add_f32 v%d, %s, v%d' % (A3 + i, fh(1e-6), A3 + i))
        for i in range(8):
            a('v_cvt_pk_bf16_f32 v%d, v%d, v%d' % (PH + 8 * t + i, A3 + 2 * i, A3 + 2 * i + 1))
    stamp(2)
    a('s_barrier')
    stamp(3)
    for ks in range(2):
        for b in range(9):
            pass
    order = [8] + list(range(8))
    for b in order:
        for ks in range(2):
            a('ds_read_b128 %s, v%d offset:%d' % (vr(KVA + 36 * ks + 4 * b), vLA, ks * KS_STRIDE + b * 1024))
    for t in range(4):
        A4 = ACC4[t & 1]
        O = OUT[t & 1]
        for b in order:
            a('v_mfma_f32_16x16x32_bf16 %s, %s, %s, 0' % (vr(A4 + 4 * b), vr(KVA + 4 * b), vr(PH + 8 * t)))
            a('v_mfma_f32_16x16x32_bf16 %s, %s, %s, %s' % (vr(A4 + 4 * b), vr(KVA + 36 + 4 * b), vr(PH + 8 * t + 4), vr(A4 + 4 * b)))
        a('v_add_f32 v4, %s, v%d' % (fh(1e-6), A4 + 32))
        a('v_rcp_f32 v4, v4')
        a('s_mov_b32 %s, %d' % (sT, t * 4096))
        for B in range(4):
            for i in range(8):
                a('v_mul_f32 v%d, v4, v%d' % (A4 + 8 * B + i, A4 + 8 * B + i))
            for i in range(4):
                a('v_cvt_pk_bf16_f32 v%d, v%d, v%d' % (O + 4 * B + i, A4 + 8 * B + 2 * i, A4 + 8 * B + 2 * i + 1))
            a('buffer_store_dwordx4 %s, v%d, %s, %s offen offset:%d%s' % (vr(O + 4 * B), vQ, sO, sT, B * 64, nto_s))
    stamp(4)
    if stamps:
        a('s_waitcnt vmcnt(0)')
        stamp(5)
        stamp_flush(6)
    a.label('L_end')
    a('s_endpgm')
    return HEADER % (LDS_TOTAL, NAME, NAME, NAME) + a.text() + FOOTER % NAME


if __name__ == '__main__':
    import argparse
    ap = argparse.ArgumentParser()
    ap.add_argument('-o', default='cdna_kernels/%s.s' % NAME)
    ap.add_argument('--depth', type=int, default=6)
    ap.add_argument('--stamps', action='store_true')
    ap.add_argument('--ntkv', action='store_true')
    ap.add_argument('--ntq', action='store_true')
    ap.add_argument('--nto', action='store_true')
    args = ap.parse_args()
    open(args.o, 'w').write(gen(args.depth, args.stamps, args.ntkv, args.ntq, args.nto))
```

```python
import re

TRANS = ('v_exp_f32', 'v_log_f32', 'v_rcp_f32', 'v_rsq_f32', 'v_sqrt_f32', 'v_sin_f32', 'v_cos_f32')


def _regs(tok):
    tok = tok.strip()
    tok = tok.lstrip('-')
    m = re.match(r'^abs\((.*)\)$', tok)
    if m:
        tok = m.group(1)
    m = re.match(r'^\|(.*)\|$', tok)
    if m:
        tok = m.group(1)
    m = re.match(r'^([vsa])(\d+)$', tok)
    if m:
        return [(m.group(1), int(m.group(2)))]
    m = re.match(r'^([vsa])\[(\d+):(\d+)\]$', tok)
    if m:
        return [(m.group(1), i) for i in range(int(m.group(2)), int(m.group(3)) + 1)]
    if tok in ('vcc', 'exec', 'm0', 'scc', 'vcc_lo', 'vcc_hi', 'exec_lo', 'exec_hi'):
        if tok.startswith('vcc'):
            return [('x', 'vcc')]
        if tok.startswith('exec'):
            return [('x', 'exec')]
        return [('x', tok)]
    return []


class Ins:
    __slots__ = ('text', 'mn', 'ops', 'mods', 'w', 'r', 'cls', 'passes', 'srcc', 'srcab', 'data')

    def __init__(self, text):
        self.text = text
        body = text.split(';')[0].strip()
        parts = body.split(None, 1)
        self.mn = parts[0]
        rest = parts[1] if len(parts) > 1 else ''
        ops = []
        cur = ''
        depth = 0
        for ch in rest:
            if ch in '[(':
                depth += 1
            if ch in '])':
                depth -= 1
            if ch == ',' and depth == 0:
                ops.append(cur.strip())
                cur = ''
            else:
                cur += ch
        if cur.strip():
            ops.append(cur.strip())
        mods = []
        if ops:
            last = ops[-1].split()
            ops[-1] = last[0]
            mods = last[1:]
        self.ops = ops
        self.mods = mods
        self.w = set()
        self.r = set()
        self.srcc = set()
        self.srcab = set()
        self.data = set()
        self.passes = 0
        mn = self.mn
        R = lambda i: set(_regs(ops[i])) if i < len(ops) else set()
        allr = lambda a: set().union(*[R(i) for i in range(a, len(ops))]) if len(ops) > a else set()
        if mn.startswith('v_mfma'):
            self.cls = 'mfma'
            self.w = R(0)
            self.srcab = R(1) | R(2)
            self.srcc = R(3)
            self.r = self.srcab | self.srcc
            self.passes = 8 if '32x32' in mn else 4
        elif mn.startswith('v_cmp'):
            self.cls = 'valu'
            self.w = R(0)
            self.r = allr(1)
        elif mn.startswith('v_readfirstlane') or mn.startswith('v_readlane'):
            self.cls = 'valu'
            self.w = R(0)
            self.r = allr(1)
        elif mn.startswith('v_permlane'):
            self.cls = 'valu'
            self.w = R(0) | R(1)
            self.r = R(0) | R(1)
        elif mn.startswith('v_dot2c') or mn.startswith('v_fmac'):
            self.cls = 'dot' if mn.startswith('v_dot') else 'valu'
            self.w = R(0)
            self.r = allr(0)
            self.srcc = R(0)
            self.srcab = allr(1)
        elif mn.startswith('v_dot'):
            self.cls = 'dot'
            self.w = R(0)
            self.r = allr(1)
            self.srcc = R(3)
            self.srcab = R(1) | R(2)
        elif mn.startswith('v_'):
            self.cls = 'trans' if mn.replace('_e32', '').replace('_e64', '') in TRANS else 'valu'
            self.w = R(0)
            self.r = allr(1)
            if mn.startswith('v_cndmask') and len(ops) == 3:
                self.r |= {('x', 'vcc')}
        elif mn.startswith('ds_read') or mn.startswith('ds_bpermute') or mn.startswith('ds_add_rtn') or mn.startswith('ds_swizzle'):
            self.cls = 'ds'
            self.w = R(0)
            self.r = allr(1)
        elif mn.startswith('ds_'):
            self.cls = 'ds'
            self.r = allr(0)
        elif mn.startswith('buffer_load') or mn.startswith('global_load'):
            self.cls = 'vmem'
            if 'lds' in mods or '_lds_' in mn:
                self.r = allr(0) | {('x', 'm0')}
            else:
                self.w = R(0)
                self.r = allr(1)
        elif mn.startswith('buffer_store') or mn.startswith('global_store'):
            self.cls = 'vmem'
            self.r = allr(0)
            if 'x4' in mn or 'x3' in mn:
                self.data = R(0) if mn.startswith('buffer') else R(1)
        elif mn.startswith('buffer_atomic'):
            self.cls = 'vmem'
            self.r = allr(0)
            if 'sc0' in mods:
                self.w = set(list(sorted(R(0)))[:1]) if 'cmpswap' in mn else R(0)
        elif mn.startswith('buffer_inv') or mn.startswith('buffer_wbl2'):
            self.cls = 'vmem'
        elif mn.startswith('s_atomic'):
            self.cls = 'smem'
            self.w = R(0) if 'glc' in mods else set()
            self.r = allr(0)
        elif mn.startswith('s_load') or mn.startswith('s_memtime') or mn.startswith('s_memrealtime'):
            self.cls = 'smem'
            self.w = R(0)
            self.r = allr(1)
        elif mn in ('s_nop', 's_waitcnt', 's_barrier', 's_sleep', 's_setprio', 's_endpgm', 's_branch') or mn.startswith('s_cbranch'):
            self.cls = 'ctl'
        elif mn.startswith('s_cmp') or mn.startswith('s_bitcmp'):
            self.cls = 'salu'
            self.r = allr(0)
            self.w = {('x', 'scc')}
        elif mn.startswith('s_'):
            self.cls = 'salu'
            self.w = R(0)
            self.r = allr(1)
            if 'saveexec' in mn:
                self.w |= {('x', 'exec')}
        else:
            raise ValueError('unknown instruction ' + text)

    def is_dpp(self):
        return self.mn.endswith('_dpp') or any(m.startswith(('row_', 'quad_perm', 'wave_')) for m in self.mods)

    def is_sdwa(self):
        return self.mn.endswith('_sdwa')


def need_ws(p, c):
    n = 0
    pv = p.cls in ('valu', 'trans', 'dot')
    cv = c.cls in ('valu', 'trans', 'dot')
    vw = {x for x in p.w if x[0] in 'va'}
    sw = {x for x in p.w if x[0] in 'sx'}
    if pv:
        if c.cls == 'mfma' and (vw & c.r):
            n = max(n, 2 if p.cls != 'dot' else 3)
        if p.cls == 'trans' and (vw & c.r) and c.cls != 'trans':
            n = max(n, 1)
        if p.cls == 'trans' and (vw & c.r) and c.cls == 'trans':
            n = max(n, 1)
        if sw & c.r:
            if c.cls == 'vmem':
                n = max(n, 5)
            elif cv:
                n = max(n, 4 if c.mn.startswith(('v_readlane', 'v_writelane')) else 2)
            elif c.cls == 'salu':
                n = max(n, 1)
        if (vw & c.r):
            if c.mn.startswith(('v_readfirstlane', 'v_readlane')):
                n = max(n, 1)
            if c.mn.startswith('v_permlane') or c.is_dpp():
                n = max(n, 2)
            if p.is_sdwa():
                n = max(n, 1)
        if p.cls == 'dot':
            if c.cls == 'dot' and c.mn == p.mn:
                if vw & c.srcab:
                    n = max(n, 3)
            elif vw & (c.r | c.w):
                n = max(n, 3)
        if ('x', 'exec') in p.w:
            n = max(n, 5)
    if p.cls == 'mfma':
        P = p.passes
        if c.cls == 'mfma':
            if p.w & c.srcab:
                n = max(n, P + 4)
            if p.w & c.srcc:
                if not (c.srcc == p.w and c.passes == p.passes):
                    n = max(n, P + 2)
            elif p.w & c.w:
                n = max(n, P + 2)
        else:
            if p.w & (c.r | c.w):
                n = max(n, P + 4)
        if cv and (p.srcc & c.w):
            n = max(n, P - 1)
    if p.cls == 'salu' and ('x', 'm0') in p.w and ('x', 'm0') in c.r:
        n = max(n, 1)
    if p.cls == 'vmem' and p.data and (p.data & c.w):
        n = max(n, 2 if cv else 1)
    return n


class Asm:
    def __init__(self):
        self.out = []
        self.hist = []
        self.pos = 0
        self.vm = []
        self.lg = []
        self.smem = set()
        self.smem_pending = False
        self.auto = True

    def raw(self, text):
        self.out.append(text)

    def comment(self, text):
        self.out.append('    ; ' + text)

    def _nop(self, n):
        while n > 0:
            k = min(n, 16)
            self.out.append('    s_nop %d' % (k - 1))
            self.pos += k
            n -= k

    def flush_hazards(self, n=16):
        if self.hist:
            need = 0
            for p, pp in self.hist[-24:]:
                worst = 0
                if p.cls == 'mfma':
                    worst = p.passes + 4
                elif p.cls in ('valu', 'trans', 'dot'):
                    worst = 5 if any(x[0] in 'sx' for x in p.w) else 3
                elif p.cls == 'salu' and ('x', 'm0') in p.w:
                    worst = 1
                elif p.cls == 'vmem' and p.data:
                    worst = 2
                need = max(need, worst - (self.pos - pp - 1))
            if need > 0:
                self._nop(need)
        self.hist = []

    def label(self, name, reset=True):
        self.flush_hazards()
        self.out.append(name + ':')

    def reset_counters(self):
        self.vm = []
        self.lg = []
        self.smem = set()
        self.smem_pending = False

    def waitcnt(self, vm=None, lg=None):
        s = []
        if vm is not None:
            vm = min(vm, 62)
            s.append('vmcnt(%d)' % vm)
            if len(self.vm) > vm:
                self.vm = self.vm[len(self.vm) - vm:] if vm else []
        if lg is not None:
            lg = min(lg, 14)
            s.append('lgkmcnt(%d)' % lg)
            if len(self.lg) > lg:
                self.lg = self.lg[len(self.lg) - lg:] if lg else []
            if lg == 0:
                self.smem = set()
                self.smem_pending = False
        self.out.append('    s_waitcnt ' + ' '.join(s))
        self.pos += 1

    def __call__(self, text):
        for line in text.strip().split('\n'):
            line = line.strip()
            if not line or line.startswith(';'):
                continue
            self.emit(line)

    def emit(self, text):
        ins = Ins(text)
        if ins.mn == 's_waitcnt':
            vm = re.search(r'vmcnt\((\d+)\)', text)
            lg = re.search(r'lgkmcnt\((\d+)\)', text)
            self.waitcnt(int(vm.group(1)) if vm else None, int(lg.group(1)) if lg else None)
            return
        touched = ins.r | ins.w
        needvm = None
        for i, d in enumerate(self.vm):
            if d & touched:
                needvm = len(self.vm) - 1 - i
        needlg = None
        for i, d in enumerate(self.lg):
            if d & touched:
                needlg = len(self.lg) - 1 - i
        if self.smem & touched:
            needlg = 0
        if needlg is not None and self.smem_pending:
            needlg = 0
        if needvm is not None or needlg is not None:
            self.waitcnt(needvm, needlg)
        need = 0
        for p, pp in self.hist[-24:]:
            w = need_ws(p, ins)
            if w:
                have = self.pos - pp - 1
                need = max(need, w - have)
        if need > 0:
            self._nop(need)
        if ins.mn == 's_nop':
            self.out.append('    ' + text)
            self.pos += int(ins.ops[0]) + 1
            return
        if ins.mn.startswith('s_cbranch') or ins.mn == 's_branch':
            self.flush_hazards()
        self.out.append('    ' + text)
        self.hist.append((ins, self.pos))
        self.pos += 1
        if ins.cls == 'vmem':
            self.vm.append(set(ins.w))
            if len(self.vm) > 63:
                raise RuntimeError('too many vmem outstanding')
        elif ins.cls == 'ds':
            self.lg.append(set(ins.w))
        elif ins.cls == 'smem':
            self.smem |= set(ins.w)
            self.smem_pending = True

    def text(self):
        return '\n'.join(self.out) + '\n'
```

```python
import struct, sys, math
from asmdsl import Asm

NAME = 'standalone__linear_kernel_rfa__prompt'


def fh(x):
    return '0x%08x' % struct.unpack('<I', struct.pack('<f', x))[0]


SCALE = 128.0 ** -0.25
LOG2E = 1.4426950408889634
C1 = SCALE * LOG2E

HEADER = """; Kernarg layout for this problem (56 bytes, ptrs only, base s[0:1]):
; @launch grid=(256,1,1) block=(512,1,1) lds=%d
.amdgcn_target "amdgcn-amd-amdhsa--gfx950"
.text
.globl %s_kernel
.p2align 8
.type %s_kernel,@function
%s_kernel:
"""

FOOTER = """
.section .rodata,"a"
.p2align 6
.amdhsa_kernel %s_kernel
  .amdhsa_next_free_vgpr 256
  .amdhsa_next_free_sgpr 102
  .amdhsa_accum_offset 256
  .amdhsa_group_segment_fixed_size 0
  .amdhsa_kernarg_size 56
  .amdhsa_user_sgpr_count 2
  .amdhsa_user_sgpr_kernarg_segment_ptr 1
  .amdhsa_system_sgpr_workgroup_id_x 1
.end_amdhsa_kernel
"""


def vr(a, n=4):
    return 'v[%d:%d]' % (a, a + n - 1)


def interleave(a, main, fill, ratio):
    fi = 0
    for i, m in enumerate(main):
        a(m)
        for _ in range(ratio[i] if i < len(ratio) else 0):
            if fi < len(fill):
                a(fill[fi])
                fi += 1
    while fi < len(fill):
        a(fill[fi])
        fi += 1


def gen(stamps=False, nto=False, order='A', sleep=1):
    a = Asm()
    VB = 0
    PHI = 65536
    OMB = 98304
    XB = 114688
    KS = 9216
    MISC = XB + 2 * KS
    LDS_TOTAL = MISC + 256
    PART = 16640
    FL = 8 * PART
    HSTRIDE = FL + 1024
    sK, sV, sQ, sO, sOM, sWS, sDBG, sST = 's[24:27]', 's[28:31]', 's[32:35]', 's[36:39]', 's[40:43]', 's[44:47]', 's[48:51]', 's[52:55]'
    sL, sOFF, sHEAD, sCHUNK, sWAVE = 's18', 's19', 's20', 's21', 's22'
    sT, sT2, sW2, sLW = 's56', 's57', 's58', 's59'
    sC1, sKB, sQB, sSEL, sLO, sHI, sSPIN, sNONCE = 's60', 's61', 's62', 's63', 's64', 's65', 's66', 's67'
    nto_s = ' nt' if nto else ''

    def stamp(idx):
        if stamps:
            a('s_memrealtime s[%d:%d]' % (70 + 2 * idx, 71 + 2 * idx))

    def stamp_flush(n):
        if stamps:
            a('s_waitcnt lgkmcnt(0)')
            a('s_lshl_b32 s68, %s, 3' % sL)
            a('s_add_u32 s68, s68, %s' % sWAVE)
            a('s_lshl_b32 s68, s68, 6')
            a('s_mov_b64 exec, 1')
            for i in range(n):
                a('v_mov_b32 v1, s%d' % (70 + 2 * i))
                a('v_mov_b32 v2, %d' % (4 * i))
                a('buffer_store_dword v1, v2, %s, s68 offen' % sST)
            a('s_mov_b64 exec, -1')

    a('s_cmp_ge_u32 s2, 256')
    a('s_cbranch_scc1 L_end')
    stamp(0)
    a('s_load_dwordx8 s[4:11], s[0:1], 0')
    a('s_load_dwordx4 s[12:15], s[0:1], 32')
    a('s_load_dwordx2 s[16:17], s[0:1], 48')
    a('s_and_b32 %s, s2, 7' % sL)
    a('s_lshl_b32 %s, %s, 5' % (sL, sL))
    a('s_lshr_b32 %s, s2, 3' % sOFF)
    a('s_add_u32 %s, %s, %s' % (sL, sL, sOFF))
    a('s_lshl_b32 %s, %s, 16' % (sOFF, sL))
    a('s_lshr_b32 %s, %s, 3' % (sHEAD, sL))
    a('s_and_b32 %s, %s, 7' % (sCHUNK, sL))
    a('v_lshrrev_b32 v1, 6, v0')
    a('v_and_b32 v0, 63, v0')
    a('v_readfirstlane_b32 %s, v1' % sWAVE)
    a('v_and_b32 v1, 15, v0')
    a('v_lshrrev_b32 v2, 4, v0')

    def srd(base, lo, hi, off, nbytes):
        if off is None:
            a('s_mov_b32 s%d, s%d' % (base, lo))
            a('s_mov_b32 s%d, s%d' % (base + 1, hi))
        else:
            a('s_add_u32 s%d, s%d, %s' % (base, lo, off))
            a('s_addc_u32 s%d, s%d, 0' % (base + 1, hi))
        a('s_mov_b32 s%d, 0x%x' % (base + 2, nbytes))
        a('s_mov_b32 s%d, 0x00020000' % (base + 3))

    def stamp_srd():
        if stamps:
            a('s_mov_b32 %s, 0x4000000' % sT)
            srd(52, 16, 17, sT, 256 * 8 * 64)

    a('s_cmp_lt_u32 %s, 4' % sWAVE)
    a('s_cbranch_scc1 L_kvwave')

    vX, vV, vPW, vLA, vEPS, vM3 = 16, 17, 18, 19, 20, 21
    OM, XT, PH, ACC, KVL, RDEN = 32, 96, 160, 192, 212, 252
    SQ, DSQ, NEG1 = 212, 216, 220
    a('s_sub_u32 %s, %s, 4' % (sLW, sWAVE))
    a('s_lshl_b32 %s, %s, 12' % (sW2, sLW))
    a('v_lshlrev_b32 v3, 8, v1')
    a('v_lshl_add_u32 v3, v2, 4, v3')
    a('v_add_u32 v%d, %s, v3' % (vX, sW2))
    a('s_add_u32 %s, %s, %d' % (sT2, sW2, OMB))
    a('s_waitcnt lgkmcnt(0)')
    stamp(1)
    srd(40, 10, 11, None, 16384)
    srd(24, 6, 7, sOFF, 65536)
    issued = [0]
    mark = {}
    for kk in range(4):
        a('s_add_u32 m0, %s, %d' % (sT2, kk * 1024 - kk * 64))
        a('buffer_load_dwordx4 v%d, %s, 0 offen offset:%d lds' % (vX, sOM, kk * 64))
    issued[0] += 4
    mark['om'] = issued[0]

    def tile_loads(i, srdn):
        a('s_mov_b32 %s, %d' % (sT, i * 16384))
        for kk in range(4):
            a('buffer_load_dwordx4 %s, v%d, %s, %s offen offset:%d nt' % (vr(XT + 16 * i + 4 * kk), vX, srdn, sT, kk * 64))
        issued[0] += 4

    for i in range(4):
        tile_loads(i, sK)
    stamp(2)
    srd(28, 8, 9, sOFF, 65536)
    srd(32, 4, 5, sOFF, 65536)
    srd(36, 12, 13, sOFF, 65536)
    stamp_srd()
    a('s_mov_b32 %s, %s' % (sC1, fh(C1)))
    a('s_mov_b32 %s, %s' % (sKB, fh(0.5 * SCALE * C1)))
    a('s_mov_b32 %s, %s' % (sQB, fh(-0.5 * SCALE * C1)))
    a('s_mov_b32 %s, 0x07060302' % sSEL)
    a('v_lshrrev_b32 v3, 3, v0')
    a('v_and_b32 v4, 6, v3')
    a('v_and_b32 v5, 7, v0')
    a('v_xor_b32 v4, v4, v5')
    a('v_lshlrev_b32 v4, 4, v4')
    a('v_lshl_add_u32 v4, v3, 8, v4')
    a('s_lshl_b32 %s, %s, 13' % (sT, sLW))
    a('v_add_u32 v%d, %s, v4' % (vV, sT))
    a('v_lshlrev_b32 v%d, 4, v0' % vLA)
    a('s_lshr_b32 %s, %s, 1' % (sT, sLW))
    a('s_lshl_b32 %s, %s, 12' % (sT, sT))
    a('s_and_b32 %s, %s, 1' % (sT2, sLW))
    a('s_lshl_b32 %s, %s, 3' % (sT2, sT2))
    a('s_add_u32 %s, %s, %s' % (sT, sT, sT2))
    a('s_add_u32 %s, %s, %d' % (sT, sT, PHI))
    a('v_add_u32 v%d, %s, v%d' % (vPW, sT, vLA))
    a('v_add_u32 v%d, %d, v%d' % (vLA, OMB, vLA))
    a('v_mov_b32 v%d, %s' % (vEPS, fh(1e-6)))
    a('v_mov_b32 v%d, %s' % (vM3, fh(-3.0)))
    for i in range(4):
        a('v_mov_b32 v%d, 0xbf80bf80' % (NEG1 + i))
    a('v_mov_b32 v%d, 0' % (SQ + 2))
    a('v_mov_b32 v%d, 0' % (SQ + 3))
    a('s_waitcnt vmcnt(%d)' % (issued[0] - mark['om']))
    a('s_barrier')
    for f in range(16):
        a('ds_read_b128 %s, v%d offset:%d' % (vr(OM + 4 * f), vLA, f * 1024))

    def vunit(j):
        half, rb = j >> 1, j & 1
        for n in range(4):
            a('s_mov_b32 %s, %d' % (sT, rb * 32768 + n * 2048 + half * 128))
            a('s_add_u32 m0, %s, %d' % (sW2, VB + half * 32768 + rb * 16384 + n * 1024))
            a('buffer_load_dwordx4 v%d, %s, %s offen nt lds' % (vV, sV, sT))
        issued[0] += 4
        mark['v%d' % j] = issued[0]

    def phi_tile(i, isq):
        X = XT + 16 * i
        mf = []
        for mt in range(4):
            for kk in range(4):
                c = '0' if kk == 0 else vr(ACC + 4 * mt)
                if isq:
                    mf.append('v_mfma_f32_16x16x32_bf16 %s, %s, %s, %s' % (vr(ACC + 4 * mt), vr(OM + 16 * mt + 4 * kk), vr(X + 4 * kk), c))
                else:
                    mf.append('v_mfma_f32_16x16x32_bf16 %s, %s, %s, %s' % (vr(ACC + 4 * mt), vr(X + 4 * kk), vr(OM + 16 * mt + 4 * kk), c))
        dots = []
        for x in range(16):
            acc = 4 + (x & 3)
            c = '0' if x < 4 else 'v%d' % acc
            dots.append('v_dot2_f32_bf16 v%d, v%d, v%d, %s' % (acc, X + x, X + x, c))
        red = ['v_add_f32 v4, v4, v5', 'v_add_f32 v6, v6, v7', 'v_add_f32 v4, v4, v6']
        if isq:
            red += ['v_mov_b32 v5, v4', 'v_permlane16_swap_b32 v4, v5', 'v_add_f32 v4, v4, v5',
                    'v_mov_b32 v5, v4', 'v_permlane32_swap_b32 v4, v5', 'v_add_f32 v4, v4, v5',
                    'v_fma_f32 v4, v4, %s, v%d' % (sQB, vM3)]
        else:
            red += ['v_mov_b32 v5, 0x3f400000',
                    'v_fma_f32 v4, v4, %s, v5' % sKB,
                    'v_and_b32 v5, 0xffff0000, v4',
                    'v_sub_f32 v5, v4, v5',
                    'v_and_b32 v6, 0xffff0000, v5',
                    'v_perm_b32 v%d, v5, v4, %s' % (SQ, sSEL),
                    'v_sub_f32 v6, v5, v6',
                    'v_lshrrev_b32 v%d, 16, v6' % (SQ + 1),
                    'v_mfma_f32_16x16x32_bf16 %s, %s, %s, 0' % (vr(DSQ), vr(SQ), vr(NEG1))]

        def post(mt):
            l = []
            for r in range(4):
                bias = 'v4' if isq else 'v%d' % (DSQ + r)
                l.append('v_fma_f32 v%d, v%d, %s, %s' % (ACC + 4 * mt + r, ACC + 4 * mt + r, sC1, bias))
            for r in range(4):
                l.append('v_exp_f32 v%d, v%d' % (ACC + 4 * mt + r, ACC + 4 * mt + r))
            for r in range(4):
                l.append('v_add_f32 v%d, v%d, v%d' % (ACC + 4 * mt + r, vEPS, ACC + 4 * mt + r))
            if isq:
                d = PH + 8 * i + 2 * mt
            else:
                d = 8 + 2 * (mt & 1)
            l.append('v_cvt_pk_bf16_f32 v%d, v%d, v%d' % (d, ACC + 4 * mt, ACC + 4 * mt + 1))
            l.append('v_cvt_pk_bf16_f32 v%d, v%d, v%d' % (d + 1, ACC + 4 * mt + 2, ACC + 4 * mt + 3))
            if not isq:
                l.append('ds_write_b64 v%d, %s offset:%d' % (vPW, vr(d, 2), i * 8192 + mt * 1024))
            return l
        interleave(a, mf[0:8], dots, [2] * 8)
        interleave(a, mf[8:16], red, [2, 2, 2, 2, 2, 2, 2, 2])
        for mt in range(4):
            for x in post(mt):
                a(x)

    for i in range(4):
        a('s_nop 0 ; K tile %d' % i)
        a('v_mov_b32 v3, v%d' % (XT + 16 * i + 15))
        if i == 0:
            stamp(3)
        if i == 3:
            stamp(4)
        vunit(i)
        phi_tile(i, False)
    a('s_waitcnt lgkmcnt(0)')
    stamp(5)
    for j in range(4):
        a('s_waitcnt vmcnt(%d)' % (issued[0] - mark['v%d' % j]))
        a('s_barrier')
        tile_loads(j, sQ)
    stamp(6)

    def wait_lds_flag(off, lab):
        a('v_mov_b32 v8, %d' % MISC)
        a('s_mov_b32 %s, 0x100000' % sSPIN)
        a.label(lab)
        a('ds_read_b32 v9, v8 offset:%d' % off)
        a('s_waitcnt lgkmcnt(0)')
        a('v_readfirstlane_b32 %s, v9' % sT)
        a('s_cmp_ge_u32 %s, 4' % sT)
        a('s_cbranch_scc1 %s_done' % lab)
        a('s_sleep 1')
        a('s_sub_u32 %s, %s, 1' % (sSPIN, sSPIN))
        a('s_cmp_lg_u32 %s, 0' % sSPIN)
        a('s_cbranch_scc1 %s' % lab)
        a.label(lab + '_done')

    XO = XB - OMB

    def load_kva(half):
        if half == 0:
            for ks in range(2):
                a('ds_read_b128 %s, v%d offset:%d' % (vr(KVL + 32 + 4 * ks), vLA, XO + ks * KS + 8192))
            base = KVL
        else:
            base = OM
        for b in range(4):
            for ks in range(2):
                a('ds_read_b128 %s, v%d offset:%d' % (vr(base + 8 * b + 4 * ks), vLA, XO + ks * KS + (4 * half + b) * 1024))

    def out_half(t, half):
        base = KVL if half == 0 else OM
        A4 = ACC if (half == 0 or not (t & 1)) else KVL
        O = XT + 16 * t + 8 * half
        if half == 0:
            a('v_mfma_f32_16x16x32_bf16 %s, %s, %s, 0' % (vr(ACC + 16), vr(KVL + 32), vr(PH + 8 * t)))
            a('v_mfma_f32_16x16x32_bf16 %s, %s, %s, %s' % (vr(ACC + 16), vr(KVL + 36), vr(PH + 8 * t + 4), vr(ACC + 16)))
        for b in range(4):
            a('v_mfma_f32_16x16x32_bf16 %s, %s, %s, 0' % (vr(A4 + 4 * b), vr(base + 8 * b), vr(PH + 8 * t)))
            a('v_mfma_f32_16x16x32_bf16 %s, %s, %s, %s' % (vr(A4 + 4 * b), vr(base + 8 * b + 4), vr(PH + 8 * t + 4), vr(A4 + 4 * b)))
        if half == 0:
            a('v_add_f32 v4, v%d, v%d' % (vEPS, ACC + 16))
            a('v_rcp_f32 v%d, v4' % (RDEN + t))
        a('s_mov_b32 %s, %d' % (sT, t * 16384))
        for B in range(2):
            for i in range(8):
                a('v_mul_f32 v%d, v%d, v%d' % (A4 + 8 * B + i, RDEN + t, A4 + 8 * B + i))
            for i in range(4):
                a('v_cvt_pk_bf16_f32 v%d, v%d, v%d' % (O + 4 * B + i, A4 + 8 * B + 2 * i, A4 + 8 * B + 2 * i + 1))
            a('buffer_store_dwordx4 %s, v%d, %s, %s offen offset:%d%s' % (vr(O + 4 * B), vX, sO, sT, half * 128 + B * 64, nto_s))

    if order == 'A':
        phi_tile(0, True)
        phi_tile(1, True)
        stamp(7)
        wait_lds_flag(0, 'L_xlo')
        stamp(8)
        load_kva(0)
        out_half(0, 0)
        out_half(1, 0)
        phi_tile(2, True)
        out_half(2, 0)
        phi_tile(3, True)
        out_half(3, 0)
        stamp(9)
        wait_lds_flag(4, 'L_xhi')
        stamp(10)
        load_kva(1)
        for t in range(4):
            out_half(t, 1)
    stamp(11)
    if stamps:
        a('s_waitcnt vmcnt(0)')
        stamp(12)
        stamp_flush(13)
    a('s_endpgm')

    a.label('L_kvwave')
    a.reset_counters()
    a.smem_pending = True
    a.smem = {('s', i) for i in range(4, 18)}
    aV, aP, vXW, vXz, voffP, vFl, vZo, vMisc = 16, 17, 21, 25, 26, 27, 28, 29
    VF, ONES, PHR, ACC2, ACCZ, P = 32, 48, 64, 192, 224, 228
    LD = 32
    a('v_lshrrev_b32 v3, 2, v0')
    a('v_and_b32 v4, 6, v3')
    a('v_bfe_u32 v5, v0, 1, 1')
    a('s_lshl_b32 %s, %s, 1' % (sT, sWAVE))
    a('v_add_u32 v5, %s, v5' % sT)
    a('v_xor_b32 v4, v4, v5')
    a('v_lshlrev_b32 v4, 4, v4')
    a('v_lshl_add_u32 v4, v3, 7, v4')
    a('v_and_b32 v5, 1, v0')
    a('v_lshl_add_u32 v%d, v5, 3, v4' % aV)
    a('v_lshlrev_b32 v%d, 4, v0' % voffP)
    a('v_bfe_u32 v4, v1, 2, 1')
    a('v_lshlrev_b32 v4, 10, v4')
    a('v_lshl_add_u32 v4, v2, 8, v4')
    a('v_lshrrev_b32 v5, 3, v1')
    a('v_lshl_add_u32 v4, v5, 6, v4')
    a('v_and_b32 v5, 3, v1')
    a('v_lshl_add_u32 v4, v5, 4, v4')
    a('s_lshr_b32 %s, %s, 1' % (sT, sWAVE))
    a('s_lshl_b32 %s, %s, 11' % (sT, sT))
    a('s_and_b32 %s, %s, 1' % (sT2, sWAVE))
    a('s_lshl_b32 %s, %s, 7' % (sT2, sT2))
    a('s_add_u32 %s, %s, %s' % (sW2, sT, sT2))
    for x in range(4):
        a('s_xor_b32 %s, %s, %d' % (sT, sWAVE, x))
        a('s_lshl_b32 %s, %s, 10' % (sT2, sT))
        a('s_add_u32 %s, %s, %d' % (sT2, sT2, PHI))
        a('v_add_u32 v%d, %s, v%d' % (aP + x, sT2, voffP))
        a('s_lshr_b32 %s, %s, 1' % (sT2, sT))
        a('s_mul_i32 %s, %s, %d' % (sT2, sT2, KS))
        a('s_and_b32 %s, %s, 1' % (sT, sT))
        a('s_lshl_b32 %s, %s, 3' % (sT, sT))
        a('s_add_u32 %s, %s, %s' % (sT, sT, sT2))
        a('s_add_u32 %s, %s, %d' % (sT, sT, XB))
        if x == 0:
            a('v_add_u32 v%d, %s, v%d' % (vXz, sT, voffP))
        a('s_add_u32 %s, %s, %s' % (sT, sT, sW2))
        a('v_add_u32 v%d, %s, v4' % (vXW + x, sT))
    a('v_lshlrev_b32 v%d, 4, v2' % vZo)
    a('v_and_b32 v5, 7, v0')
    a('v_lshlrev_b32 v%d, 2, v5' % vFl)
    a('v_mov_b32 v%d, %d' % (vMisc, MISC))
    a('s_mov_b32 %s, 0x00003f80' % sLO)
    a('s_mov_b32 %s, 0x3f800000' % sHI)
    for i in range(4):
        a('v_mov_b32 v%d, 0x3f803f80' % (ONES + i))
    a('s_waitcnt lgkmcnt(0)')
    stamp(1)
    a('s_mul_i32 %s, %s, %d' % (sT, sHEAD, HSTRIDE))
    srd(44, 16, 17, sT, HSTRIDE)
    srd(48, 14, 15, None, 256)
    stamp_srd()
    a('s_cmp_eq_u32 %s, 0' % sWAVE)
    a('s_cbranch_scc0 L_nononce')
    a('v_mov_b32 v5, 0')
    a('ds_write_b32 v%d, v5' % vMisc)
    a('ds_write_b32 v%d, v5 offset:4' % vMisc)
    a('v_lshrrev_b32 v5, 3, v0')
    a('v_lshl_add_u32 v5, v5, 7, v%d' % vFl)
    a('s_mov_b32 %s, %d' % (sT, FL))
    a('buffer_load_dword v6, v5, %s, %s offen sc1' % (sWS, sT))
    a('s_mov_b32 %s, 0' % sNONCE)
    a('s_waitcnt vmcnt(0)')
    a.label('L_scan')
    a('s_add_u32 %s, %s, 1' % (sNONCE, sNONCE))
    a('v_cmp_eq_u32 vcc, %s, v6' % sNONCE)
    a('s_cbranch_vccnz L_scan')
    a('v_mov_b32 v8, %s' % sNONCE)
    a('v_mov_b32 v9, 0')
    a('s_lshl_b32 %s, %s, 2' % (sT, sHEAD))
    a('v_mov_b32 v7, %s' % sT)
    a('s_mov_b64 exec, 1')
    a('buffer_atomic_cmpswap v[8:9], v7, %s, 0 offen sc0' % sDBG)
    a('s_mov_b64 exec, -1')
    a.label('L_nononce')
    a('s_waitcnt lgkmcnt(0)')
    a('s_barrier')
    a.reset_counters()
    stamp(2)
    a('s_barrier')
    stamp(3)

    vfi = [0]

    def vread(half, j):
        d = VF + 4 * (vfi[0] & 3)
        vfi[0] += 1
        for u in range(2):
            a('ds_read_b64_tr_b16 %s, v%d offset:%d' % (vr(d + 2 * u, 2), aV, half * 32768 + j * 4096 + u * 2048))
        return d

    def steps(half, js, first_phi):
        ds = []
        for j in js:
            ds.append(vread(half, j))
            if first_phi:
                for x in range(4):
                    a('ds_read_b128 %s, v%d offset:%d' % (vr(PHR + 16 * j + 4 * x), aP + x, j * 4096))
        for j, d in zip(js, ds):
            for x in range(4):
                c = '0' if j == 0 else vr(ACC2 + 16 * half + 4 * x)
                a('v_mfma_f32_16x16x32_bf16 %s, %s, %s, %s' % (vr(ACC2 + 16 * half + 4 * x), vr(PHR + 16 * j + 4 * x), vr(d), c))
            if half == 0:
                c = '0' if j == 0 else vr(ACCZ)
                a('v_mfma_f32_16x16x32_bf16 %s, %s, %s, %s' % (vr(ACCZ), vr(PHR + 16 * j), vr(ONES), c))

    def publish(half):
        a('s_mul_i32 %s, %s, %d' % (sT, sCHUNK, PART))
        a('s_lshl_b32 %s, %s, 11' % (sT2, sWAVE))
        a('s_add_u32 %s, %s, %s' % (sT2, sT2, sT))
        if half:
            a('s_add_u32 %s, %s, 8192' % (sT2, sT2))
        for k in range(2):
            for x in (2 * k, 2 * k + 1):
                s = ACC2 + 16 * half + 4 * x
                a('v_cvt_pk_bf16_f32 v%d, v%d, v%d' % (P + 8 * half + 2 * x, s, s + 1))
                a('v_cvt_pk_bf16_f32 v%d, v%d, v%d' % (P + 8 * half + 2 * x + 1, s + 2, s + 3))
            a('buffer_store_dwordx4 %s, v%d, %s, %s offen offset:%d sc1' % (vr(P + 8 * half + 4 * k), voffP, sWS, sT2, k * 1024))
        if half == 0:
            a('s_lshl_b32 %s, %s, 6' % (sT2, sWAVE))
            a('s_add_u32 %s, %s, %s' % (sT2, sT2, sT))
            a('s_add_u32 %s, %s, 16384' % (sT2, sT2))
            a('buffer_store_dwordx4 %s, v%d, %s, %s offen sc1' % (vr(ACCZ), vZo, sWS, sT2))

    def flag(half):
        a('s_lshl_b32 %s, %s, 7' % (sT, sWAVE))
        a('s_lshl_b32 %s, %s, 2' % (sT2, sCHUNK))
        a('s_add_u32 %s, %s, %s' % (sT, sT, sT2))
        a('s_add_u32 %s, %s, %d' % (sT, sT, FL + half * 512))
        a('v_mov_b32 v5, %s' % sNONCE)
        a('v_mov_b32 v6, 0')
        a('s_waitcnt vmcnt(0)')
        a('s_mov_b64 exec, 1')
        a('buffer_store_dword v5, v6, %s, %s offen sc1' % (sWS, sT))
        a('s_mov_b64 exec, -1')

    def poll(half):
        lab = 'L_poll%d' % half
        a('s_lshl_b32 %s, %s, 7' % (sT, sWAVE))
        a('s_add_u32 %s, %s, %d' % (sT, sT, FL + half * 512))
        a('s_mov_b32 %s, 0x40000' % sSPIN)
        a.label(lab)
        a('buffer_load_dword v6, v%d, %s, %s offen sc1' % (vFl, sWS, sT))
        a('s_waitcnt vmcnt(0)')
        a('v_cmp_ne_u32 vcc, %s, v6' % sNONCE)
        a('s_cbranch_vccz %s_done' % lab)
        a('s_sleep %d' % sleep)
        a('s_sub_u32 %s, %s, 1' % (sSPIN, sSPIN))
        a('s_cmp_lg_u32 %s, 0' % sSPIN)
        a('s_cbranch_scc1 %s' % lab)
        a.label(lab + '_done')

    def gather(half):
        base = LD + (0 if half == 0 else 96)
        n = 12 if half == 0 else 8
        a('s_lshl_b32 %s, %s, 11' % (sW2, sWAVE))
        a('s_lshl_b32 %s, %s, 6' % (sLW, sWAVE))
        for p in range(8):
            a('s_add_u32 %s, %s, %d' % (sT, sW2, p * PART + half * 8192))
            for k in range(2):
                a('buffer_load_dwordx4 %s, v%d, %s, %s offen offset:%d sc1' % (vr(base + n * p + 4 * k), voffP, sWS, sT, k * 1024))
            if half == 0:
                a('s_add_u32 %s, %s, %d' % (sT2, sLW, p * PART + 16384))
                a('buffer_load_dwordx4 %s, v%d, %s, %s offen sc1' % (vr(base + n * p + 8), vZo, sWS, sT2))
        for p in range(8):
            for x in range(8):
                src = base + n * p + x
                for h, sel in ((0, sLO), (1, sHI)):
                    acc = ACC2 + 16 * half + 2 * x + h
                    c = '0' if p == 0 else 'v%d' % acc
                    a('v_dot2_f32_bf16 v%d, v%d, %s, %s' % (acc, src, sel, c))
            if half == 0:
                for x in range(4):
                    if p == 0:
                        a('v_mov_b32 v%d, v%d' % (ACCZ + x, base + 8 + x))
                    else:
                        a('v_add_f32 v%d, v%d, v%d' % (ACCZ + x, ACCZ + x, base + n * p + 8 + x))
        for x in range(4):
            s = ACC2 + 16 * half + 4 * x
            a('v_cvt_pk_bf16_f32 v%d, v%d, v%d' % (P + 8 * half + 2 * x, s, s + 1))
            a('v_cvt_pk_bf16_f32 v%d, v%d, v%d' % (P + 8 * half + 2 * x + 1, s + 2, s + 3))
            a('ds_write_b64 v%d, %s offset:%d' % (vXW + x, vr(P + 8 * half + 2 * x, 2), half * 4096))
        if half == 0:
            a('v_cvt_pk_bf16_f32 v10, v%d, v%d' % (ACCZ, ACCZ + 1))
            a('v_cvt_pk_bf16_f32 v11, v%d, v%d' % (ACCZ + 2, ACCZ + 3))
            a('ds_write_b64 v%d, v[10:11] offset:8192' % vXz)
        a('v_mov_b32 v5, 1')
        a('s_waitcnt lgkmcnt(0)')
        a('s_mov_b64 exec, 1')
        a('ds_add_u32 v%d, v5 offset:%d' % (vMisc, 4 * half))
        a('s_mov_b64 exec, -1')

    steps(0, [0, 1, 2, 3], True)
    for j in range(4, 8):
        for x in range(4):
            a('ds_read_b128 %s, v%d offset:%d' % (vr(PHR + 16 * j + 4 * x), aP + x, j * 4096))
    a('s_cmp_eq_u32 %s, 0' % sWAVE)
    a('s_cbranch_scc0 L_nn2')
    a('s_waitcnt vmcnt(0)')
    a('v_readfirstlane_b32 %s, v8' % sT)
    a('s_cmp_eq_u32 %s, 0' % sT)
    a('s_cselect_b32 %s, %s, %s' % (sNONCE, sNONCE, sT))
    a('v_mov_b32 v5, %s' % sNONCE)
    a('ds_write_b32 v%d, v5 offset:8' % vMisc)
    a.label('L_nn2')
    a('s_waitcnt lgkmcnt(0)')
    a('s_barrier')
    a('ds_read_b32 v12, v%d offset:8' % vMisc)
    steps(0, [4, 5, 6, 7], False)
    a('v_readfirstlane_b32 %s, v12' % sNONCE)
    publish(0)
    stamp(4)
    a('s_barrier')
    steps(1, [0, 1, 2, 3], False)
    flag(0)
    a('s_barrier')
    stamp(5)
    steps(1, [4, 5, 6, 7], False)
    publish(1)
    stamp(6)
    flag(1)
    stamp(7)
    poll(0)
    stamp(8)
    gather(0)
    stamp(9)
    poll(1)
    stamp(10)
    gather(1)
    stamp(11)
    stamp(12)
    stamp_flush(13)
    a.label('L_end')
    a('s_endpgm')
    return HEADER % (LDS_TOTAL, NAME, NAME, NAME) + a.text() + FOOTER % NAME


if __name__ == '__main__':
    import argparse
    ap = argparse.ArgumentParser()
    ap.add_argument('-o', default='cdna_kernels/%s.s' % NAME)
    ap.add_argument('--stamps', action='store_true')
    ap.add_argument('--nto', action='store_true')
    ap.add_argument('--order', default='A')
    ap.add_argument('--sleep', type=int, default=1)
    args = ap.parse_args()
    open(args.o, 'w').write(gen(args.stamps, args.nto, args.order, args.sleep))
```

```python
import struct, sys, math
from asmdsl import Asm
from gen2 import HEADER, FOOTER, NAME, vr, fh, interleave, SCALE, LOG2E, C1


def gen(stamps=False, stflag='nt', order='C', sleep=1, qmode=1, kvorder=0, earlylo=True):
    a = Asm()
    VB = 0
    PHI = 65536
    RING = 98304
    OMB = 131072
    XB = OMB
    KS = 9216
    MISC = XB + 2 * KS
    LDS_TOTAL = MISC + 256
    PART = 16640
    FL = 8 * PART
    HSTRIDE = FL + 1024
    sK, sV, sQ, sO, sOM, sWS, sDBG, sST = 's[24:27]', 's[28:31]', 's[32:35]', 's[36:39]', 's[40:43]', 's[44:47]', 's[48:51]', 's[52:55]'
    sL, sOFF, sHEAD, sCHUNK, sWAVE = 's18', 's19', 's20', 's21', 's22'
    sT, sT2, sW2, sLW = 's56', 's57', 's58', 's59'
    sC1, sKB, sQB, sSEL, sLO, sHI, sSPIN, sNONCE, sRING = 's60', 's61', 's62', 's63', 's64', 's65', 's66', 's67', 's69'
    st_s = (' ' + stflag) if stflag else ''

    def stamp(idx):
        if stamps:
            a('s_memrealtime s[%d:%d]' % (70 + 2 * idx, 71 + 2 * idx))

    def stamp_flush(n):
        if stamps:
            a('s_waitcnt lgkmcnt(0)')
            a('s_lshl_b32 s68, %s, 3' % sL)
            a('s_add_u32 s68, s68, %s' % sWAVE)
            a('s_lshl_b32 s68, s68, 6')
            a('s_mov_b64 exec, 1')
            for i in range(n):
                a('v_mov_b32 v1, s%d' % (70 + 2 * i))
                a('v_mov_b32 v2, %d' % (4 * i))
                a('buffer_store_dword v1, v2, %s, s68 offen' % sST)
            a('s_mov_b64 exec, -1')

    a('s_cmp_ge_u32 s2, 256')
    a('s_cbranch_scc1 L_end')
    stamp(0)
    a('s_load_dwordx8 s[4:11], s[0:1], 0')
    a('s_load_dwordx4 s[12:15], s[0:1], 32')
    a('s_load_dwordx2 s[16:17], s[0:1], 48')
    a('s_and_b32 %s, s2, 7' % sL)
    a('s_lshl_b32 %s, %s, 5' % (sL, sL))
    a('s_lshr_b32 %s, s2, 3' % sOFF)
    a('s_add_u32 %s, %s, %s' % (sL, sL, sOFF))
    a('s_lshl_b32 %s, %s, 16' % (sOFF, sL))
    a('s_lshr_b32 %s, %s, 3' % (sHEAD, sL))
    a('s_and_b32 %s, %s, 7' % (sCHUNK, sL))
    a('v_lshrrev_b32 v1, 6, v0')
    a('v_and_b32 v0, 63, v0')
    a('v_readfirstlane_b32 %s, v1' % sWAVE)
    a('v_and_b32 v1, 15, v0')
    a('v_lshrrev_b32 v2, 4, v0')
    a('s_and_b32 %s, %s, 3' % (sLW, sWAVE))
    a('s_lshl_b32 %s, %s, 12' % (sW2, sLW))

    def srd(base, lo, hi, off, nbytes):
        if off is None:
            a('s_mov_b32 s%d, s%d' % (base, lo))
            a('s_mov_b32 s%d, s%d' % (base + 1, hi))
        else:
            a('s_add_u32 s%d, s%d, %s' % (base, lo, off))
            a('s_addc_u32 s%d, s%d, 0' % (base + 1, hi))
        a('s_mov_b32 s%d, 0x%x' % (base + 2, nbytes))
        a('s_mov_b32 s%d, 0x00020000' % (base + 3))

    def stamp_srd():
        if stamps:
            a('s_mov_b32 %s, 0x4000000' % sT)
            srd(52, 16, 17, sT, 256 * 8 * 64)

    def make_vV(dst):
        a('v_lshrrev_b32 v3, 3, v0')
        a('v_and_b32 v4, 6, v3')
        a('v_and_b32 v5, 7, v0')
        a('v_xor_b32 v4, v4, v5')
        a('v_lshlrev_b32 v4, 4, v4')
        a('v_lshl_add_u32 v4, v3, 8, v4')
        a('s_lshl_b32 %s, %s, 13' % (sT, sLW))
        a('v_add_u32 v%d, %s, v4' % (dst, sT))

    issued = [0]
    mark = {}

    def vunit(vV, j):
        half, rb = j >> 1, j & 1
        for n in range(4):
            a('s_mov_b32 %s, %d' % (sT, rb * 32768 + n * 2048 + half * 128))
            a('s_add_u32 m0, %s, %d' % (sW2, VB + half * 32768 + rb * 16384 + n * 1024))
            a('buffer_load_dwordx4 v%d, %s, %s offen nt lds' % (vV, sV, sT))
        issued[0] += 4
        mark['v%d' % j] = issued[0]

    a('s_cmp_lt_u32 %s, 4' % sWAVE)
    a('s_cbranch_scc1 L_kvwave')

    vS, aR, vV, vPW, vLA, vEPS, vM3, vO = 16, 20, 24, 25, 26, 27, 28, 29
    OM, XT, PH, ACC, KVL, KVH, RDEN = 32, 96, 112, 144, 164, 204, 236
    SQ, DSQ, NEG1, aR2 = 204, 208, 212, 216
    a('v_lshlrev_b32 v3, 8, v1')
    a('v_lshl_add_u32 v3, v2, 4, v3')
    a('v_add_u32 v3, %s, v3' % sW2)
    a('v_lshlrev_b32 v4, 8, v2')
    a('v_add_u32 v4, %s, v4' % sW2)
    a('v_xor_b32 v5, v1, v2')
    for n in range(4):
        a('v_xor_b32 v6, %d, v5' % (4 * n))
        a('v_lshl_add_u32 v%d, v6, 4, v4' % (vS + n))
    a('s_add_u32 %s, %s, %d' % (sT2, sW2, OMB))
    a('s_lshl_b32 %s, %s, 13' % (sRING, sLW))
    a('s_add_u32 %s, %s, %d' % (sRING, sRING, RING))
    a('s_waitcnt lgkmcnt(0)')
    stamp(1)
    srd(40, 10, 11, None, 16384)
    srd(24, 6, 7, sOFF, 65536)
    for kk in range(4):
        a('s_add_u32 m0, %s, %d' % (sT2, kk * 1024 - kk * 64))
        a('buffer_load_dwordx4 v3, %s, 0 offen offset:%d lds' % (sOM, kk * 64))
    issued[0] += 4
    mark['om'] = issued[0]

    def slot_off(name, i):
        if name == 'k' and i >= 2:
            return ('w', VB + 32768 + (i - 2) * 16384)
        if name == 'q' and i >= 2:
            return ('w', VB + (i - 2) * 16384)
        return ('r', (i & 1) * 4096)

    def tile_dma(name, i, srdn, parts=(0, 1, 2, 3)):
        a('s_mov_b32 %s, %d' % (sT, i * 16384))
        kind, off = slot_off(name, i)
        a('s_add_u32 m0, %s, %d' % (sRING if kind == 'r' else sW2, off))
        for n in parts:
            a('buffer_load_dwordx4 v%d, %s, %s offen offset:%d nt lds' % (vS + n, srdn, sT, n * 1024))
        issued[0] += len(parts)
        mark[name + str(i)] = issued[0]

    tile_dma('k', 0, sK)
    tile_dma('k', 1, sK)
    stamp(2)
    srd(28, 8, 9, sOFF, 65536)
    srd(32, 4, 5, sOFF, 65536)
    srd(36, 12, 13, sOFF, 65536)
    stamp_srd()
    a('s_mov_b32 %s, %s' % (sC1, fh(C1)))
    a('s_mov_b32 %s, %s' % (sKB, fh(0.5 * SCALE * C1)))
    a('s_mov_b32 %s, %s' % (sQB, fh(-0.5 * SCALE * C1)))
    a('s_mov_b32 %s, 0x07060302' % sSEL)
    make_vV(vV)
    a('v_xor_b32 v5, v1, v2')
    a('v_lshlrev_b32 v4, 8, v1')
    a('v_add_u32 v4, %s, v4' % sRING)
    for kk in range(4):
        a('v_xor_b32 v6, %d, v5' % (4 * kk))
        a('v_lshl_add_u32 v%d, v6, 4, v4' % (aR + kk))
    a('v_lshlrev_b32 v4, 8, v1')
    a('v_add_u32 v4, %s, v4' % sW2)
    for kk in range(4):
        a('v_xor_b32 v6, %d, v5' % (4 * kk))
        a('v_lshl_add_u32 v%d, v6, 4, v4' % (aR2 + kk))
    a('v_lshlrev_b32 v%d, 4, v0' % vLA)
    a('s_lshr_b32 %s, %s, 1' % (sT, sLW))
    a('s_lshl_b32 %s, %s, 12' % (sT, sT))
    a('s_and_b32 %s, %s, 1' % (sT2, sLW))
    a('s_lshl_b32 %s, %s, 3' % (sT2, sT2))
    a('s_add_u32 %s, %s, %s' % (sT, sT, sT2))
    a('s_add_u32 %s, %s, %d' % (sT, sT, PHI))
    a('v_add_u32 v%d, %s, v%d' % (vPW, sT, vLA))
    a('v_add_u32 v%d, %d, v%d' % (vLA, OMB, vLA))
    a('v_lshlrev_b32 v4, 10, v2')
    a('v_lshl_add_u32 v4, v1, 3, v4')
    a('v_add_u32 v%d, %s, v4' % (vO, sW2))
    a('v_mov_b32 v%d, %s' % (vEPS, fh(1e-6)))
    a('v_mov_b32 v%d, %s' % (vM3, fh(-3.0)))
    for i in range(4):
        a('v_mov_b32 v%d, 0xbf80bf80' % (NEG1 + i))
    a('v_mov_b32 v%d, 0' % (SQ + 2))
    a('v_mov_b32 v%d, 0' % (SQ + 3))
    a('s_waitcnt vmcnt(%d)' % (issued[0] - mark['om']))
    a('s_barrier')
    for f in range(16):
        a('ds_read_b128 %s, v%d offset:%d' % (vr(OM + 4 * f), vLA, f * 1024))

    def tile_read(name, i):
        a('s_waitcnt vmcnt(%d)' % (issued[0] - mark[name + str(i)]))
        kind, off = slot_off(name, i)
        for kk in range(4):
            a('ds_read_b128 %s, v%d offset:%d' % (vr(XT + 4 * kk), (aR if kind == 'r' else aR2) + kk, off))
        a('s_waitcnt lgkmcnt(0)')

    def phi_tile(i, isq):
        X = XT
        mf = []
        for mt in range(4):
            for kk in range(4):
                c = '0' if kk == 0 else vr(ACC + 4 * mt)
                if isq:
                    mf.append('v_mfma_f32_16x16x32_bf16 %s, %s, %s, %s' % (vr(ACC + 4 * mt), vr(OM + 16 * mt + 4 * kk), vr(X + 4 * kk), c))
                else:
                    mf.append('v_mfma_f32_16x16x32_bf16 %s, %s, %s, %s' % (vr(ACC + 4 * mt), vr(X + 4 * kk), vr(OM + 16 * mt + 4 * kk), c))
        dots = []
        for x in range(16):
            acc = 4 + (x & 3)
            c = '0' if x < 4 else 'v%d' % acc
            dots.append('v_dot2_f32_bf16 v%d, v%d, v%d, %s' % (acc, X + x, X + x, c))
        red = ['v_add_f32 v4, v4, v5', 'v_add_f32 v6, v6, v7', 'v_add_f32 v4, v4, v6']
        if isq:
            red += ['v_mov_b32 v5, v4', 'v_permlane16_swap_b32 v4, v5', 'v_add_f32 v4, v4, v5',
                    'v_mov_b32 v5, v4', 'v_permlane32_swap_b32 v4, v5', 'v_add_f32 v4, v4, v5',
                    'v_fma_f32 v4, v4, %s, v%d' % (sQB, vM3)]
        else:
            red += ['v_mov_b32 v5, 0x3f400000',
                    'v_fma_f32 v4, v4, %s, v5' % sKB,
                    'v_and_b32 v5, 0xffff0000, v4',
                    'v_sub_f32 v5, v4, v5',
                    'v_and_b32 v6, 0xffff0000, v5',
                    'v_perm_b32 v%d, v5, v4, %s' % (SQ, sSEL),
                    'v_sub_f32 v6, v5, v6',
                    'v_lshrrev_b32 v%d, 16, v6' % (SQ + 1),
                    'v_mfma_f32_16x16x32_bf16 %s, %s, %s, 0' % (vr(DSQ), vr(SQ), vr(NEG1))]

        def post(mt):
            l = []
            for r in range(4):
                bias = 'v4' if isq else 'v%d' % (DSQ + r)
                l.append('v_fma_f32 v%d, v%d, %s, %s' % (ACC + 4 * mt + r, ACC + 4 * mt + r, sC1, bias))
            for r in range(4):
                l.append('v_exp_f32 v%d, v%d' % (ACC + 4 * mt + r, ACC + 4 * mt + r))
            for r in range(4):
                l.append('v_add_f32 v%d, v%d, v%d' % (ACC + 4 * mt + r, vEPS, ACC + 4 * mt + r))
            if isq:
                d = PH + 8 * i + 2 * mt
            else:
                d = 8 + 2 * (mt & 1)
            l.append('v_cvt_pk_bf16_f32 v%d, v%d, v%d' % (d, ACC + 4 * mt, ACC + 4 * mt + 1))
            l.append('v_cvt_pk_bf16_f32 v%d, v%d, v%d' % (d + 1, ACC + 4 * mt + 2, ACC + 4 * mt + 3))
            if not isq:
                l.append('ds_write_b64 v%d, %s offset:%d' % (vPW, vr(d, 2), i * 8192 + mt * 1024))
            return l
        interleave(a, mf[0:8], dots, [2] * 8)
        interleave(a, mf[8:16], red, [2, 2, 2, 2, 2, 2, 2, 2])
        for mt in range(4):
            for x in post(mt):
                a(x)

    tile_dma('k', 2, sK)
    for i in range(4):
        tile_read('k', i)
        if i == 0:
            stamp(3)
            tile_dma('k', 3, sK)
            a('s_barrier')
        if i == 3:
            stamp(4)
        if i >= 2:
            vunit(vV, i)
        if i == 3 and qmode == 4:
            tile_dma('q', 0, sQ)
        phi_tile(i, False)
    a('s_waitcnt lgkmcnt(0)')
    stamp(5)
    a('s_barrier')
    if qmode != 4:
        tile_dma('q', 0, sQ)
    a('s_waitcnt vmcnt(%d)' % (issued[0] - mark['v3']))
    a('s_barrier')
    stamp(6)

    def wait_lds_flag(off, lab):
        a('v_mov_b32 v8, %d' % MISC)
        a('s_mov_b32 %s, 0x100000' % sSPIN)
        a.label(lab)
        a('ds_read_b32 v9, v8 offset:%d' % off)
        a('s_waitcnt lgkmcnt(0)')
        a('v_readfirstlane_b32 %s, v9' % sT)
        a('s_cmp_ge_u32 %s, 4' % sT)
        a('s_cbranch_scc1 %s_done' % lab)
        a('s_sleep 1')
        a('s_sub_u32 %s, %s, 1' % (sSPIN, sSPIN))
        a('s_cmp_lg_u32 %s, 0' % sSPIN)
        a('s_cbranch_scc1 %s' % lab)
        a.label(lab + '_done')

    def load_kva(half):
        if half == 0:
            for ks in range(2):
                a('ds_read_b128 %s, v%d offset:%d' % (vr(KVL + 32 + 4 * ks), vLA, ks * KS + 8192))
        base = KVL if half == 0 else KVH
        for b in range(4):
            for ks in range(2):
                a('ds_read_b128 %s, v%d offset:%d' % (vr(base + 8 * b + 4 * ks), vLA, ks * KS + (4 * half + b) * 1024))

    def out_half(t, half, A4=None):
        base = KVL if half == 0 else KVH
        if A4 is None:
            A4 = ACC
        if half == 0:
            a('v_mfma_f32_16x16x32_bf16 %s, %s, %s, 0' % (vr(ACC + 16), vr(PH + 8 * t), vr(KVL + 32)))
            a('v_mfma_f32_16x16x32_bf16 %s, %s, %s, %s' % (vr(ACC + 16), vr(PH + 8 * t + 4), vr(KVL + 36), vr(ACC + 16)))
        for b in range(4):
            a('v_mfma_f32_16x16x32_bf16 %s, %s, %s, 0' % (vr(A4 + 4 * b), vr(PH + 8 * t), vr(base + 8 * b)))
            a('v_mfma_f32_16x16x32_bf16 %s, %s, %s, %s' % (vr(A4 + 4 * b), vr(PH + 8 * t + 4), vr(base + 8 * b + 4), vr(A4 + 4 * b)))
            if half == 0 and b == 3:
                pass
        if half == 0:
            for r in range(4):
                a('v_add_f32 v%d, v%d, v%d' % (4 + r, vEPS, ACC + 16 + r))
            for r in range(4):
                a('v_rcp_f32 v%d, v%d' % (RDEN + 4 * t + r, 4 + r))
        a('s_mov_b32 %s, %d' % (sT, t * 16384))
        for r in range(4):
            for b in range(4):
                a('v_mul_f32 v%d, v%d, v%d' % (A4 + 4 * b + r, RDEN + 4 * t + r, A4 + 4 * b + r))
            a('v_cvt_pk_bf16_f32 v%d, v%d, v%d' % (8 + 2 * r, A4 + r, A4 + 4 + r))
            a('v_cvt_pk_bf16_f32 v%d, v%d, v%d' % (9 + 2 * r, A4 + 8 + r, A4 + 12 + r))
            a('buffer_store_dwordx2 %s, v%d, %s, %s offen offset:%d%s' % (vr(8 + 2 * r, 2), vO, sO, sT, half * 128 + r * 256, st_s))
            issued[0] += 1

    def qtile(i):
        tile_read('q', i)
        if qmode == 5 and i < 2:
            tile_dma('q', i + 2, sQ)
        if qmode == 6:
            if i < 3:
                tile_dma('q', i + 1, sQ, parts=(2, 3))
            if i < 2:
                tile_dma('q', i + 2, sQ, parts=(0, 1))
        if qmode == 7 and i < 3:
            tile_dma('q', i + 1, sQ, parts=(1, 2, 3))
            if i < 2:
                tile_dma('q', i + 2, sQ, parts=(0,))
        phi_tile(i, True)
        if qmode in (1, 4) and i == 0:
            tile_dma('q', 3, sQ)
        if qmode == 3 and i < 2:
            tile_dma('q', i + 2, sQ)

    if qmode < 5:
        wait_lds_flag(12, 'L_pub')
        tile_dma('q', 1, sQ)
    elif qmode == 5:
        tile_dma('q', 1, sQ)
    elif qmode == 6:
        tile_dma('q', 1, sQ, parts=(0, 1))
    elif qmode == 7:
        tile_dma('q', 1, sQ, parts=(0,))
    if qmode in (1, 2, 4):
        tile_dma('q', 2, sQ)
    if qmode == 2:
        tile_dma('q', 3, sQ)

    if order == 'A':
        qtile(0)
        qtile(1)
        stamp(7)
        wait_lds_flag(0, 'L_xlo')
        stamp(8)
        load_kva(0)
        out_half(0, 0)
        out_half(1, 0)
        qtile(2)
        out_half(2, 0)
        qtile(3)
        out_half(3, 0)
        stamp(9)
        wait_lds_flag(4, 'L_xhi')
        stamp(10)
        load_kva(1)
        for t in range(4):
            out_half(t, 1, ACC if not (t & 1) else OM)
    elif order == 'B':
        qtile(0)
        qtile(1)
        qtile(2)
        stamp(7)
        wait_lds_flag(0, 'L_xlo')
        stamp(8)
        load_kva(0)
        out_half(0, 0)
        out_half(1, 0)
        out_half(2, 0)
        qtile(3)
        out_half(3, 0)
        stamp(9)
        wait_lds_flag(4, 'L_xhi')
        stamp(10)
        load_kva(1)
        for t in range(4):
            out_half(t, 1, ACC if not (t & 1) else OM)
    elif order == 'C':
        for i in range(4):
            qtile(i)
        stamp(7)
        wait_lds_flag(0, 'L_xlo')
        stamp(8)
        load_kva(0)
        for t in range(4):
            out_half(t, 0, ACC if not (t & 1) else OM)
        stamp(9)
        wait_lds_flag(4, 'L_xhi')
        stamp(10)
        load_kva(1)
        for t in range(4):
            out_half(t, 1, ACC if not (t & 1) else OM)
    stamp(11)
    if stamps:
        a('s_waitcnt vmcnt(0)')
        stamp(12)
        stamp_flush(13)
    a('s_endpgm')

    a.label('L_kvwave')
    a.reset_counters()
    a.smem_pending = True
    a.smem = {('s', i) for i in range(4, 18)}
    aV, aP, vXW, vXz, voffP, vFl, vZo, vMisc, vV = 16, 17, 21, 25, 26, 27, 28, 29, 30
    VF, ONES, PHR, ACC2, ACCZ, P = 32, 48, 64, 192, 224, 228
    LD = 32
    make_vV(vV)
    a('v_lshrrev_b32 v3, 2, v0')
    a('v_and_b32 v4, 6, v3')
    a('v_bfe_u32 v5, v0, 1, 1')
    a('s_lshl_b32 %s, %s, 1' % (sT, sWAVE))
    a('v_add_u32 v5, %s, v5' % sT)
    a('v_xor_b32 v4, v4, v5')
    a('v_lshlrev_b32 v4, 4, v4')
    a('v_lshl_add_u32 v4, v3, 7, v4')
    a('v_and_b32 v5, 1, v0')
    a('v_lshl_add_u32 v%d, v5, 3, v4' % aV)
    a('v_lshlrev_b32 v%d, 4, v0' % voffP)
    a('v_and_b32 v4, 3, v1')
    a('v_lshlrev_b32 v4, 10, v4')
    a('v_lshl_add_u32 v4, v2, 8, v4')
    a('v_lshrrev_b32 v5, 2, v1')
    a('v_lshl_add_u32 v4, v5, 4, v4')
    for x in range(4):
        a('s_xor_b32 %s, %s, %d' % (sT, sWAVE, x))
        a('s_lshl_b32 %s, %s, 10' % (sT2, sT))
        a('s_add_u32 %s, %s, %d' % (sT2, sT2, PHI))
        a('v_add_u32 v%d, %s, v%d' % (aP + x, sT2, voffP))
        a('s_lshr_b32 %s, %s, 1' % (sT2, sT))
        a('s_mul_i32 %s, %s, %d' % (sT2, sT2, KS))
        a('s_and_b32 %s, %s, 1' % (sT, sT))
        a('s_lshl_b32 %s, %s, 3' % (sT, sT))
        a('s_add_u32 %s, %s, %s' % (sT, sT, sT2))
        a('s_add_u32 %s, %s, %d' % (sT, sT, XB))
        if x == 0:
            a('v_add_u32 v%d, %s, v%d' % (vXz, sT, voffP))
        a('s_lshl_b32 %s, %s, 6' % (sT2, sWAVE))
        a('s_add_u32 %s, %s, %s' % (sT, sT, sT2))
        a('v_add_u32 v%d, %s, v4' % (vXW + x, sT))
    a('v_lshlrev_b32 v%d, 4, v2' % vZo)
    a('v_and_b32 v5, 7, v0')
    a('v_lshlrev_b32 v%d, 2, v5' % vFl)
    a('v_mov_b32 v%d, %d' % (vMisc, MISC))
    a('s_mov_b32 %s, 0x00003f80' % sLO)
    a('s_mov_b32 %s, 0x3f800000' % sHI)
    for i in range(4):
        a('v_mov_b32 v%d, 0x3f803f80' % (ONES + i))
    a('s_waitcnt lgkmcnt(0)')
    stamp(1)
    a('s_mul_i32 %s, %s, %d' % (sT, sHEAD, HSTRIDE))
    srd(44, 16, 17, sT, HSTRIDE)
    srd(48, 14, 15, None, 256)
    srd(28, 8, 9, sOFF, 65536)
    stamp_srd()
    sOWN, sOWNZ = 's86' if not stamps else 's98', 's87' if not stamps else 's99'
    a('s_mul_i32 %s, %s, %d' % (sT, sCHUNK, PART))
    a('s_lshl_b32 %s, %s, 11' % (sOWN, sWAVE))
    a('s_add_u32 %s, %s, %s' % (sOWN, sOWN, sT))
    a('s_lshl_b32 %s, %s, 6' % (sOWNZ, sWAVE))
    a('s_add_u32 %s, %s, %s' % (sOWNZ, sOWNZ, sT))
    a('s_add_u32 %s, %s, 16384' % (sOWNZ, sOWNZ))
    a('s_cmp_eq_u32 %s, 0' % sWAVE)
    a('s_cbranch_scc0 L_nononce')
    a('v_mov_b32 v5, 0')
    a('ds_write_b32 v%d, v5' % vMisc)
    a('ds_write_b32 v%d, v5 offset:4' % vMisc)
    a('ds_write_b32 v%d, v5 offset:12' % vMisc)
    a('v_lshrrev_b32 v5, 3, v0')
    a('v_lshl_add_u32 v5, v5, 7, v%d' % vFl)
    a('s_mov_b32 %s, %d' % (sT, FL))
    a('buffer_load_dword v6, v5, %s, %s offen sc1' % (sWS, sT))
    a('s_mov_b32 %s, 0' % sNONCE)
    a('s_waitcnt vmcnt(0)')
    a.label('L_scan')
    a('s_add_u32 %s, %s, 1' % (sNONCE, sNONCE))
    a('v_cmp_eq_u32 vcc, %s, v6' % sNONCE)
    a('s_cbranch_vccnz L_scan')
    a('v_mov_b32 v8, %s' % sNONCE)
    a('v_mov_b32 v9, 0')
    a('s_lshl_b32 %s, %s, 2' % (sT, sHEAD))
    a('v_mov_b32 v7, %s' % sT)
    a('s_mov_b64 exec, 1')
    a('buffer_atomic_cmpswap v[8:9], v7, %s, 0 offen sc0' % sDBG)
    a('s_mov_b64 exec, -1')
    a.label('L_nononce')
    a('s_waitcnt lgkmcnt(0)')
    a('s_barrier')
    a.reset_counters()
    a('s_barrier')
    stamp(2)
    vunit(vV, 0)
    vunit(vV, 1)
    a('s_waitcnt vmcnt(0)')
    a('s_cmp_eq_u32 %s, 0' % sWAVE)
    a('s_cbranch_scc0 L_nn2')
    a('v_readfirstlane_b32 %s, v8' % sT)
    a('s_cmp_eq_u32 %s, 0' % sT)
    a('s_cselect_b32 %s, %s, %s' % (sNONCE, sNONCE, sT))
    a('v_mov_b32 v5, %s' % sNONCE)
    a('ds_write_b32 v%d, v5 offset:8' % vMisc)
    a.label('L_nn2')
    a('s_waitcnt lgkmcnt(0)')
    stamp(3)
    a('s_barrier')
    stamp(4)

    vfi = [0]

    def vread(half, j):
        d = VF + 4 * (vfi[0] & 3)
        vfi[0] += 1
        for u in range(2):
            a('ds_read_b64_tr_b16 %s, v%d offset:%d' % (vr(d + 2 * u, 2), aV, half * 32768 + j * 4096 + u * 2048))
        return d

    def gemm2(half, hook=None):
        ds = {}

        def rd(j):
            if j < 8:
                ds[j] = vread(half, j)
                if half == 0:
                    for x in range(4):
                        a('ds_read_b128 %s, v%d offset:%d' % (vr(PHR + 16 * j + 4 * x), aP + x, j * 4096))
        ahead = 2 if half == 0 else 3
        for j in range(ahead):
            rd(j)
        for j in range(8):
            rd(j + ahead)
            if hook and j == 5:
                hook()
            d = ds[j]
            for x in range(4):
                c = '0' if j == 0 else vr(ACC2 + 16 * half + 4 * x)
                a('v_mfma_f32_16x16x32_bf16 %s, %s, %s, %s' % (vr(ACC2 + 16 * half + 4 * x), vr(PHR + 16 * j + 4 * x), vr(d), c))
            if half == 0:
                c = '0' if j == 0 else vr(ACCZ)
                a('v_mfma_f32_16x16x32_bf16 %s, %s, %s, %s' % (vr(ACCZ), vr(PHR + 16 * j), vr(ONES), c))

    def publish(half):
        if half:
            a('s_add_u32 %s, %s, 8192' % (sT2, sOWN))
        for k in range(2):
            for x in (2 * k, 2 * k + 1):
                s = ACC2 + 16 * half + 4 * x
                a('v_cvt_pk_bf16_f32 v%d, v%d, v%d' % (P + 8 * half + 2 * x, s, s + 1))
                a('v_cvt_pk_bf16_f32 v%d, v%d, v%d' % (P + 8 * half + 2 * x + 1, s + 2, s + 3))
            a('buffer_store_dwordx4 %s, v%d, %s, %s offen offset:%d sc1' % (vr(P + 8 * half + 4 * k), voffP, sWS, sT2 if half else sOWN, k * 1024))
        if half == 0:
            a('buffer_store_dwordx4 %s, v%d, %s, %s offen sc1' % (vr(ACCZ), vZo, sWS, sOWNZ))

    sFLO = 's4'
    sP0 = 5
    sZD = 's12'
    sFME = 's13'
    sFD = 32
    sWSB = 's[44:45]'

    def flag(half, cnt):
        a('s_waitcnt vmcnt(%d) lgkmcnt(0)' % cnt if half == 0 else 's_waitcnt vmcnt(%d)' % cnt)
        a('s_atomic_swap s14, %s, %s' % (sWSB, 's15' if half else sFME))

    def poll(half):
        lab = 'L_poll%d' % half
        a('s_add_u32 %s, %s, %d' % (sT, sFLO, half * 512))
        a('s_mov_b32 %s, 0x40000' % sSPIN)
        a.label(lab)
        a('s_load_dwordx8 s[%d:%d], %s, %s glc' % (sFD, sFD + 7, sWSB, sT))
        a('s_waitcnt lgkmcnt(0)')
        a('s_and_b64 s[40:41], s[32:33], s[34:35]')
        a('s_and_b64 s[42:43], s[36:37], s[38:39]')
        a('s_or_b64 s[32:33], s[32:33], s[34:35]')
        a('s_or_b64 s[36:37], s[36:37], s[38:39]')
        a('s_and_b64 s[40:41], s[40:41], s[42:43]')
        a('s_or_b64 s[32:33], s[32:33], s[36:37]')
        a('s_and_b32 s40, s40, s41')
        a('s_or_b32 s32, s32, s33')
        a('s_xor_b32 s40, s40, %s' % sNONCE)
        a('s_xor_b32 s32, s32, %s' % sNONCE)
        a('s_or_b32 s32, s32, s40')
        a('s_cbranch_scc0 %s_done' % lab)
        if sleep:
            a('s_sleep %d' % sleep)
        a('s_sub_u32 %s, %s, 1' % (sSPIN, sSPIN))
        a('s_cmp_lg_u32 %s, 0' % sSPIN)
        a('s_cbranch_scc1 %s' % lab)
        a.label(lab + '_done')

    GL, GH = 32, 32 + 84

    def gather_issue(half):
        for i in range(7):
            if half == 0:
                base = GL + 12 * i
                a('s_add_u32 %s, s%d, %s' % (sT2, sP0 + i, sZD))
                for k in range(2):
                    a('buffer_load_dwordx4 %s, v%d, %s, s%d offen offset:%d sc1' % (vr(base + 4 * k), voffP, sWS, sP0 + i, k * 1024))
                a('buffer_load_dwordx4 %s, v%d, %s, %s offen sc1' % (vr(base + 8), vZo, sWS, sT2))
            else:
                base = GH + 8 * i
                a('s_add_u32 %s, s%d, 8192' % (sT2, sP0 + i))
                for k in range(2):
                    a('buffer_load_dwordx4 %s, v%d, %s, %s offen offset:%d sc1' % (vr(base + 4 * k), voffP, sWS, sT2, k * 1024))

    def gather_sum(half):
        for i in range(7):
            base = GL + 12 * i if half == 0 else GH + 8 * i
            for x in range(8):
                for h, sel in ((0, sLO), (1, sHI)):
                    acc = ACC2 + 16 * half + 2 * x + h
                    a('v_dot2_f32_bf16 v%d, v%d, %s, v%d' % (acc, base + x, sel, acc))
            if half == 0:
                for x in range(4):
                    a('v_add_f32 v%d, v%d, v%d' % (ACCZ + x, ACCZ + x, base + 8 + x))

    def finalize(half):
        for x in range(4):
            s = ACC2 + 16 * half + 4 * x
            a('v_cvt_pk_bf16_f32 v%d, v%d, v%d' % (P + 8 * half + 2 * x, s, s + 1))
            a('v_cvt_pk_bf16_f32 v%d, v%d, v%d' % (P + 8 * half + 2 * x + 1, s + 2, s + 3))
            a('ds_write_b64 v%d, %s offset:%d' % (vXW + x, vr(P + 8 * half + 2 * x, 2), half * 4096))
        if half == 0:
            a('v_cvt_pk_bf16_f32 v10, v%d, v%d' % (ACCZ, ACCZ + 1))
            a('v_cvt_pk_bf16_f32 v11, v%d, v%d' % (ACCZ + 2, ACCZ + 3))
            a('ds_write_b64 v%d, v[10:11] offset:8192' % vXz)
        a('v_mov_b32 v5, 1')
        a('s_waitcnt lgkmcnt(0)')
        a('s_mov_b64 exec, 1')
        a('ds_add_u32 v%d, v5 offset:%d' % (vMisc, 4 * half))
        a('s_mov_b64 exec, -1')

    a('ds_read_b32 v12, v%d offset:8' % vMisc)
    gemm2(0)
    a('v_readfirstlane_b32 %s, v12' % sNONCE)
    publish(0)
    a('s_lshl_b32 %s, %s, 7' % (sFLO, sWAVE))
    a('s_add_u32 %s, %s, %d' % (sFLO, sFLO, FL))
    a('s_lshl_b32 %s, %s, 2' % (sFME, sCHUNK))
    a('s_add_u32 %s, %s, %s' % (sFME, sFME, sFLO))
    a('s_add_u32 s15, %s, 512' % sFME)
    a('s_mov_b32 s14, %s' % sNONCE)
    a('s_lshl_b32 %s, %s, 11' % (sW2, sWAVE))
    for i in range(7):
        a('s_add_u32 %s, %s, %d' % (sT, sCHUNK, i + 1))
        a('s_and_b32 %s, %s, 7' % (sT, sT))
        a('s_mul_i32 %s, %s, %d' % (sT, sT, PART))
        a('s_add_u32 s%d, %s, %s' % (sP0 + i, sT, sW2))
    a('s_sub_u32 %s, %s, %s' % (sZD, sOWNZ, sOWN))
    stamp(5)
    a('s_barrier')
    stamp(6)
    gemm2(1, hook=(lambda: flag(0, 0)) if earlylo else None)
    publish(1)
    a('v_mov_b32 v5, 1')
    a('s_mov_b64 exec, 1')
    a('ds_add_u32 v%d, v5 offset:12' % vMisc)
    a('s_mov_b64 exec, -1')
    stamp(7)
    if not earlylo:
        flag(0, 2)
    flag(1, 0)
    stamp(8)
    poll(0)
    gather_issue(0)
    stamp(9)
    if kvorder == 0:
        poll(1)
        gather_issue(1)
        stamp(10)
        gather_sum(0)
        finalize(0)
        stamp(11)
        gather_sum(1)
        finalize(1)
    else:
        gather_sum(0)
        finalize(0)
        stamp(10)
        poll(1)
        gather_issue(1)
        stamp(11)
        gather_sum(1)
        finalize(1)
    stamp(12)
    stamp_flush(13)
    a.label('L_end')
    a('s_endpgm')
    return HEADER % (LDS_TOTAL, NAME, NAME, NAME) + a.text() + FOOTER % NAME


if __name__ == '__main__':
    import argparse
    ap = argparse.ArgumentParser()
    ap.add_argument('-o', default='cdna_kernels/%s.s' % NAME)
    ap.add_argument('--stamps', action='store_true')
    ap.add_argument('--st', default='nt')
    ap.add_argument('--order', default='C')
    ap.add_argument('--sleep', type=int, default=1)
    ap.add_argument('--qmode', type=int, default=1)
    ap.add_argument('--kvorder', type=int, default=0)
    ap.add_argument('--noearlylo', action='store_true')
    args = ap.parse_args()
    open(args.o, 'w').write(gen(args.stamps, args.st, args.order, args.sleep, args.qmode, args.kvorder, not args.noearlylo))
```

```python
import struct, sys, math
from asmdsl import Asm
from gen2 import HEADER, FOOTER, NAME, vr, fh, interleave, SCALE, LOG2E, C1


def gen(stamps=False, stflag='nt', sleep=1, plan=7, dist=2, tilemode=1, flagpos=2, pollpos=0, q0mode=0, rowmap=1):
    a = Asm()
    VB = 0
    PHI = 65536
    OMB = 131072
    XB = PHI
    KS = 5120
    MISC = PHI + 12288
    LDS_TOTAL = 163840
    PART = 8704
    FL = 4 * PART
    GSTRIDE = FL + 1024
    sK, sV, sQ, sO, sOM, sWS, sDBG, sST = 's[24:27]', 's[28:31]', 's[32:35]', 's[36:39]', 's[40:43]', 's[44:47]', 's[48:51]', 's[52:55]'
    sWSB = 's[44:45]'
    sL, sOFF, sGRP, sR, sWAVE, sHF = 's18', 's19', 's20', 's21', 's22', 's23'
    sT, sT2, sW4, sW8 = 's56', 's57', 's58', 's59'
    sSEL, sLO, sHI, sSPIN, sNONCE = 's3', 's100', 's101', 's66', 's67'
    sCB, sMH = 's68', 's69'
    sOWN, sOWNZ, sFLO, sFME, sZD = 's4', 's5', 's6', 's7', 's8'
    sP0 = 9
    st_s = (' ' + stflag) if stflag else ''
    RS = 131072 if rowmap else 32768
    NREC = 3 * RS + 32768

    fine = [None]

    def fstamp(k):
        if stamps == 2 and fine[0] is not None:
            a('s_memrealtime s[%d:%d]' % (70 + 2 * (fine[0] + k), 71 + 2 * (fine[0] + k)))

    qs = [1]

    def qstamp():
        if stamps == 3:
            a('s_memrealtime s[%d:%d]' % (70 + 2 * qs[0], 71 + 2 * qs[0]))
            qs[0] += 1

    def stamp(idx):
        if stamps == 1 or (stamps >= 2 and idx == 0):
            a('s_memrealtime s[%d:%d]' % (70 + 2 * idx, 71 + 2 * idx))

    def stamp_flush(n):
        if stamps:
            a('s_waitcnt lgkmcnt(0)')
            a('s_lshl_b32 %s, %s, 3' % (sT, sL))
            a('s_add_u32 %s, %s, %s' % (sT, sT, sWAVE))
            a('s_lshl_b32 %s, %s, 6' % (sT, sT))
            a('s_mov_b64 exec, 1')
            for i in range(n):
                a('v_mov_b32 v1, s%d' % (70 + 2 * i))
                a('v_mov_b32 v2, %d' % (4 * i))
                a('buffer_store_dword v1, v2, %s, %s offen' % (sST, sT))
            a('s_mov_b64 exec, -1')

    def srd(base, lo, hi, off, nbytes):
        if off is None:
            a('s_mov_b32 s%d, s%d' % (base, lo))
            a('s_mov_b32 s%d, s%d' % (base + 1, hi))
        else:
            a('s_add_u32 s%d, s%d, %s' % (base, lo, off))
            a('s_addc_u32 s%d, s%d, 0' % (base + 1, hi))
        a('s_mov_b32 s%d, 0x%x' % (base + 2, nbytes))
        a('s_mov_b32 s%d, 0x00020000' % (base + 3))

    vS, aR, aR2, vV, vPW, vLA, vEPS = 12, 16, 20, 24, 25, 26, 27
    vBETA, vO, aV, vNON = 28, 29, 30, 31
    OM, XT, ACC, PH = 32, 96, 112, 132
    PHR, ACC2, ACCZ = 132, 212, 220
    KVB = 164
    G = 164
    vXW, vXz, voffP, vZo, v075, aP = 204, 206, 207, 208, 209, 210
    SQ, DSQ, NEG1, ONES, P, vMSK = 224, 228, 232, 236, 240, 3
    RD = 252
    SELR = 244
    GR = ACC + 16
    sM = 84 if not stamps else None
    sMASK = [('s[%d:%d]' % (b, b + 1)) for b in (60, 62, 64, 14)]

    a('s_cmp_ge_u32 s2, 256')
    a('s_cbranch_scc1 L_end')
    stamp(0)
    a('s_load_dwordx8 s[4:11], s[0:1], 0')
    a('s_load_dwordx4 s[12:15], s[0:1], 32')
    a('s_load_dwordx2 s[16:17], s[0:1], 48')
    a('s_and_b32 %s, s2, 7' % sL)
    a('s_lshl_b32 %s, %s, 5' % (sL, sL))
    a('s_lshr_b32 %s, s2, 3' % sOFF)
    a('s_add_u32 %s, %s, %s' % (sL, sL, sOFF))
    a('s_lshr_b32 %s, %s, 1' % (sR, sL))
    a('s_and_b32 %s, %s, 3' % (sR, sR))
    if rowmap:
        a('s_lshr_b32 %s, %s, 3' % (sOFF, sL))
        a('s_lshl_b32 %s, %s, 19' % (sOFF, sOFF))
        a('s_lshl_b32 %s, %s, 15' % (sT, sR))
        a('s_add_u32 %s, %s, %s' % (sOFF, sOFF, sT))
    else:
        a('s_lshr_b32 %s, %s, 1' % (sOFF, sL))
        a('s_lshl_b32 %s, %s, 17' % (sOFF, sOFF))
    a('s_and_b32 %s, %s, 1' % (sHF, sL))
    a('v_lshrrev_b32 v1, 6, v0')
    a('v_and_b32 v0, 63, v0')
    a('v_readfirstlane_b32 %s, v1' % sWAVE)
    a('v_and_b32 v1, 15, v0')
    a('v_lshrrev_b32 v2, 4, v0')
    a('s_lshl_b32 %s, %s, 12' % (sW4, sWAVE))
    a('s_lshl_b32 %s, %s, 13' % (sW8, sWAVE))
    a('v_lshlrev_b32 v3, 8, v1')
    a('v_lshl_add_u32 v3, v2, 4, v3')
    a('s_lshr_b32 %s, %s, 1' % (sT, sWAVE))
    a('s_lshl_b32 %s, %s, 12' % (sT, sT))
    a('s_and_b32 %s, %s, 1' % (sT2, sWAVE))
    a('s_lshl_b32 %s, %s, 7' % (sT2, sT2))
    a('s_add_u32 %s, %s, %s' % (sT, sT, sT2))
    a('v_add_u32 v3, %s, v3' % sT)
    a('v_lshlrev_b32 v4, 8, v2')
    a('v_add_u32 v4, %s, v4' % sW4)
    a('v_xor_b32 v5, v1, v2')
    for n in range(4):
        a('v_xor_b32 v6, %d, v5' % (4 * n))
        a('v_lshl_add_u32 v%d, v6, 4, v4' % (vS + n))
    a('s_lshl_b32 %s, %s, 11' % (sT2, sWAVE))
    a('s_waitcnt lgkmcnt(0)')
    stamp(1)
    srd(40, 10, 11, None, 16384)
    srd(24, 6, 7, sOFF, NREC)
    issued = [0]
    mark = {}
    for j in range(2):
        a('buffer_load_dwordx4 %s, v3, %s, 0 offen offset:%d' % (vr(XT + 4 * j), sOM, j * 64))
    issued[0] += 2
    mark['om'] = issued[0]
    a.vm = []
    a('s_mov_b32 s2, %s' % sT2)

    SLOT = {('k', 0): VB + 32768, ('k', 1): VB, ('k', 2): PHI + 32768, ('k', 3): VB + 32768,
            ('q', 0): OMB, ('q', 1): VB, ('q', 2): OMB, ('q', 3): VB}

    def toff(i):
        return i * RS

    def tile_dma_l(name, i, parts=(0, 1, 2, 3)):
        l = ['s_mov_b32 %s, %d' % (sT, toff(i)), 's_add_u32 m0, %s, %d' % (sW4, SLOT[(name, i)])]
        for n in parts:
            l.append('buffer_load_dwordx4 v%d, %s, %s offen offset:%d nt lds' % (vS + n, sK if name == 'k' else sQ, sT, n * 1024))
        return l

    def vchunk_l(second, parts=(0, 1, 2, 3)):
        l = []
        for n in parts:
            l.append('s_mov_b32 %s, %d' % (sT, (2 * second + (n >> 1)) * RS + (n & 1) * 16384))
            l.append('s_add_u32 m0, %s, %d' % (sW4, VB + second * 32768 + n * 1024))
            l.append('buffer_load_dwordx4 v%d, %s, %s offen nt lds' % (vV, sV, sT))
        return l

    def dma(name, i, parts=(0, 1, 2, 3)):
        for x in (vchunk_l(i, parts) if name == 'v' else tile_dma_l(name, i, parts)):
            a(x)
        issued[0] += len(parts)
        mark[name + str(i)] = issued[0]

    def tile_dma(name, i):
        dma(name, i)

    tile_dma('k', 0)
    stamp(2)
    srd(28, 8, 9, sOFF, NREC)
    srd(32, 4, 5, sOFF, NREC)
    srd(36, 12, 13, sOFF, NREC)
    a('s_lshr_b32 %s, %s, 3' % (sGRP, sL))
    a('s_lshl_b32 %s, %s, 1' % (sGRP, sGRP))
    a('s_add_u32 %s, %s, %s' % (sGRP, sGRP, sHF))
    a('s_mul_i32 %s, %s, %d' % (sT, sGRP, GSTRIDE))
    srd(44, 16, 17, sT, GSTRIDE)
    srd(48, 14, 15, None, 256)
    if stamps:
        a('s_mov_b32 %s, 0x4000000' % sT)
        srd(52, 16, 17, sT, 256 * 8 * 64)
    a('s_lshl_b32 %s, %s, 2' % (sT, sGRP))
    a('v_mov_b32 v10, %s' % sT)
    a('s_or_b32 %s, %s, %s' % (sT, sR, sWAVE))
    a('s_cmp_eq_u32 %s, 0' % sT)
    a('s_cbranch_scc0 L_noscan1')
    a('v_bfe_u32 v6, v0, 2, 3')
    a('v_and_b32 v7, 3, v0')
    a('v_lshlrev_b32 v7, 2, v7')
    a('v_lshl_add_u32 v6, v6, 7, v7')
    a('s_mov_b32 %s, %d' % (sT, FL))
    a('buffer_load_dword v11, v6, %s, %s offen sc1' % (sWS, sT))
    a.label('L_noscan1')
    a.vm = a.vm[:-1] if a.vm and a.vm[-1] else a.vm
    a('s_mov_b32 %s, 0x07060302' % sSEL)
    a('s_mov_b32 %s, 0x00003f80' % sLO)
    a('s_mov_b32 %s, 0x3f800000' % sHI)
    for r, b in enumerate((60, 62, 64, 14)):
        m = sum(1 << (20 * q + r) for q in range(4))
        a('s_mov_b32 s%d, 0x%x' % (b, m & 0xffffffff))
        a('s_mov_b32 s%d, 0x%x' % (b + 1, m >> 32))
    a('s_and_b32 %s, %s, 3' % (sCB, sWAVE))
    a('s_lshr_b32 %s, %s, 2' % (sMH, sWAVE))
    a('s_lshl_b32 %s, %s, 7' % (sHF, sHF))
    a('v_lshlrev_b32 v4, 8, v1')
    a('v_add_u32 v4, %s, v4' % sW4)
    for kk in range(4):
        a('v_xor_b32 v6, %d, v5' % (4 * kk))
        a('v_lshl_add_u32 v%d, v6, 4, v4' % (aR + kk))
        a('v_add_u32 v%d, 0x18000, v%d' % (aR2 + kk, aR + kk))
    a('v_lshrrev_b32 v3, 3, v0')
    a('v_and_b32 v4, 6, v3')
    a('v_and_b32 v5, 7, v0')
    a('v_xor_b32 v4, v4, v5')
    a('v_lshlrev_b32 v4, 4, v4')
    a('v_lshl_add_u32 v4, v3, 8, v4')
    a('s_lshl_b32 %s, %s, 11' % (sT, sWAVE))
    a('s_add_u32 %s, %s, %s' % (sT, sT, sHF))
    a('v_add_u32 v%d, %s, v4' % (vV, sT))
    a('s_add_u32 %s, %s, %s' % (sT, sW4, sHF))
    a('v_lshlrev_b32 v4, 10, v2')
    a('v_lshl_add_u32 v4, v1, 3, v4')
    a('v_add_u32 v%d, %s, v4' % (vO, sT))
    a('v_lshlrev_b32 v%d, 4, v0' % voffP)
    a('s_add_u32 %s, %s, %d' % (sT, sW4, PHI))
    a('v_add_u32 v%d, %s, v%d' % (vPW, sT, voffP))
    a('v_add_u32 v%d, %d, v%d' % (vLA, OMB, voffP))
    a('v_mov_b32 v%d, %s' % (vEPS, fh(1e-6)))
    a('v_mov_b32 v%d, %s' % (vBETA, fh(0.5 * SCALE * C1)))
    a('v_mov_b32 v%d, 0x3f400000' % v075)
    for i in range(4):
        a('v_mov_b32 v%d, 0xbf80bf80' % (NEG1 + i))
        a('v_mov_b32 v%d, 0x3f803f80' % (ONES + i))
    a('v_mov_b32 v%d, 0' % (SQ + 2))
    a('v_mov_b32 v%d, 0' % (SQ + 3))
    a('v_lshrrev_b32 v3, 2, v0')
    a('v_and_b32 v4, 6, v3')
    a('v_bfe_u32 v5, v0, 1, 1')
    a('s_lshl_b32 %s, %s, 1' % (sT, sCB))
    a('v_add_u32 v5, %s, v5' % sT)
    a('v_xor_b32 v4, v4, v5')
    a('v_lshlrev_b32 v4, 4, v4')
    a('v_and_b32 v5, 7, v3')
    a('v_lshl_add_u32 v4, v5, 7, v4')
    a('v_lshrrev_b32 v5, 5, v0')
    a('v_lshl_add_u32 v4, v5, 12, v4')
    a('v_and_b32 v5, 1, v0')
    a('v_lshl_add_u32 v%d, v5, 3, v4' % aV)
    a('v_and_b32 v4, 3, v1')
    a('v_lshlrev_b32 v4, 10, v4')
    a('v_lshl_add_u32 v4, v2, 8, v4')
    a('v_lshrrev_b32 v5, 2, v1')
    a('v_lshl_add_u32 v4, v5, 4, v4')
    for x in range(2):
        a('s_and_b32 %s, %s, 1' % (sT, sCB))
        a('s_xor_b32 %s, %s, %d' % (sT, sT, x))
        a('s_lshl_b32 %s, %s, 1' % (sT2, sMH))
        a('s_add_u32 %s, %s, %s' % (sT2, sT2, sT))
        a('s_lshl_b32 %s, %s, 10' % (sT2, sT2))
        a('s_add_u32 %s, %s, %d' % (sT2, sT2, PHI))
        a('v_add_u32 v%d, %s, v%d' % (aP + x, sT2, voffP))
        a('s_lshl_b32 %s, %s, 3' % (sT, sT))
        a('s_mul_i32 %s, %s, %d' % (sT2, sMH, KS))
        a('s_add_u32 %s, %s, %s' % (sT, sT, sT2))
        a('s_add_u32 %s, %s, %d' % (sT, sT, XB))
        if x == 0:
            a('v_add_u32 v%d, %s, v%d' % (vXz, sT, voffP))
        a('s_lshl_b32 %s, %s, 6' % (sT2, sCB))
        a('s_add_u32 %s, %s, %s' % (sT, sT, sT2))
        a('v_add_u32 v%d, %s, v4' % (vXW + x, sT))
    a('v_lshlrev_b32 v%d, 4, v2' % vZo)
    for k in (0, 1, 4, 5):
        a('v_mov_b32 v%d, 0' % (SELR + k))
    a('v_mov_b32 v4, 0x3f80')
    a('v_mov_b32 v5, 0x3f800000')
    a('v_cndmask_b32 v%d, 0, v4, %s' % (SELR + 2, sMASK[0]))
    a('v_cndmask_b32 v%d, v%d, v5, %s' % (SELR + 2, SELR + 2, sMASK[1]))
    a('v_cndmask_b32 v%d, 0, v4, %s' % (SELR + 3, sMASK[2]))
    a('v_cndmask_b32 v%d, v%d, v5, %s' % (SELR + 3, SELR + 3, sMASK[3]))
    a('s_mul_i32 %s, %s, %d' % (sT, sR, PART))
    a('s_lshl_b32 %s, %s, 10' % (sT2, sWAVE))
    a('s_add_u32 %s, %s, %s' % (sOWN, sT, sT2))
    for i in range(3):
        a('s_add_u32 %s, %s, %d' % (sOWNZ, sR, i + 1))
        a('s_and_b32 %s, %s, 3' % (sOWNZ, sOWNZ))
        a('s_mul_i32 %s, %s, %d' % (sOWNZ, sOWNZ, PART))
        a('s_add_u32 s%d, %s, %s' % (sP0 + i, sOWNZ, sT2))
    a('s_lshl_b32 %s, %s, 6' % (sOWNZ, sWAVE))
    a('s_add_u32 %s, %s, %s' % (sOWNZ, sOWNZ, sT))
    a('s_add_u32 %s, %s, 8192' % (sOWNZ, sOWNZ))
    a('s_sub_u32 %s, %s, %s' % (sZD, sOWNZ, sOWN))
    a('s_lshl_b32 %s, %s, 7' % (sFLO, sWAVE))
    a('s_add_u32 %s, %s, %d' % (sFLO, sFLO, FL))
    a('s_lshl_b32 %s, %s, 2' % (sFME, sR))
    a('s_add_u32 %s, %s, %s' % (sFME, sFME, sFLO))
    if dist == 1:
        dma('k', 1, (0, 1))
    if dist == 2:
        dma('k', 1)
    a('v_mov_b32 v9, %s' % fh(C1))
    a('v_mov_b32 v%d, 0xffff0000' % vMSK)
    a('v_add_u32 v8, s2, v%d' % vLA)
    a('s_waitcnt vmcnt(%d)' % (issued[0] - mark['om']))
    for x in range(8):
        a('v_lshlrev_b32 v4, 16, v%d' % (XT + x))
        a('v_and_b32 v5, v%d, v%d' % (vMSK, XT + x))
        a('v_mul_f32 v4, v9, v4')
        a('v_mul_f32 v5, v9, v5')
        a('v_cvt_pk_bf16_f32 v%d, v4, v5' % (XT + 8 + x))
    a('ds_write_b128 v8, %s' % vr(XT + 8))
    a('ds_write_b128 v8, %s offset:1024' % vr(XT + 12))
    a('s_waitcnt lgkmcnt(0)')
    a('s_barrier')
    for f in range(16):
        a('ds_read_b128 %s, v%d offset:%d' % (vr(OM + 4 * f), vLA, f * 1024))

    def vchunk(second):
        dma('v', second)

    def tile_read(name, i):
        fine[0] = {('k', 2): 1, ('q', 2): 8}.get((name, i))
        fstamp(0)
        a('s_waitcnt vmcnt(%d)' % (issued[0] - mark[name + str(i)]))
        fstamp(1)
        off = SLOT[(name, i)]
        for kk in range(4):
            a('ds_read_b128 %s, v%d offset:%d' % (vr(XT + 4 * kk), (aR if off < 65536 else aR2) + kk, off if off < 65536 else off - 0x18000))
        a('s_waitcnt lgkmcnt(0)')
        fstamp(2)

    def phi_tile(i, isq, mid=None, nxt=None, extra=None):
        X = XT

        def hk(n):
            if extra and n in extra:
                extra[n]()
            if nxt:
                dma(nxt[0], nxt[1], (n,))
        fstamp(3)
        for kk in range(4):
            a('v_mfma_f32_16x16x32_bf16 %s, %s, %s, %s' % (vr(GR), vr(X + 4 * kk), vr(X + 4 * kk), '0' if kk == 0 else vr(GR)))

        def chain(mt, cinit):
            l = []
            for kk in range(4):
                c = cinit if kk == 0 else vr(ACC + 4 * mt)
                if isq:
                    l.append('v_mfma_f32_16x16x32_bf16 %s, %s, %s, %s' % (vr(ACC + 4 * mt), vr(OM + 16 * mt + 4 * kk), vr(X + 4 * kk), c))
                else:
                    l.append('v_mfma_f32_16x16x32_bf16 %s, %s, %s, %s' % (vr(ACC + 4 * mt), vr(X + 4 * kk), vr(OM + 16 * mt + 4 * kk), c))
            return l

        def bias(dst, c):
            if isq:
                return 'v_mfma_f32_16x16x32_bf16 %s, %s, %s, %s' % (dst, vr(NEG1), vr(SQ), c)
            return 'v_mfma_f32_16x16x32_bf16 %s, %s, %s, %s' % (dst, vr(SQ), vr(NEG1), c)
        red = ['v_cndmask_b32 v4, 0, v%d, %s' % (GR, sMASK[0]),
               'v_cndmask_b32 v4, v4, v%d, %s' % (GR + 1, sMASK[1]),
               'v_cndmask_b32 v4, v4, v%d, %s' % (GR + 2, sMASK[2]),
               'v_cndmask_b32 v4, v4, v%d, %s' % (GR + 3, sMASK[3]),
               'v_fma_f32 v4, v4, v%d, v%d' % (vBETA, v075),
               'v_and_b32 v5, v%d, v4' % vMSK,
               'v_sub_f32 v5, v4, v5',
               'v_and_b32 v6, v%d, v5' % vMSK,
               'v_perm_b32 v%d, v5, v4, %s' % (SQ, sSEL),
               'v_sub_f32 v6, v5, v6',
               'v_lshrrev_b32 v%d, 16, v6' % (SQ + 1)]

        def post(mt):
            l = []
            for r in range(4):
                l.append('v_exp_f32 v%d, v%d' % (ACC + 4 * mt + r, ACC + 4 * mt + r))
            for r in range(4):
                l.append('v_add_f32 v%d, v%d, v%d' % (ACC + 4 * mt + r, vEPS, ACC + 4 * mt + r))
            d = PH + 8 * i + 2 * mt if isq else 6 + 2 * (mt & 1)
            l.append('v_cvt_pk_bf16_f32 v%d, v%d, v%d' % (d, ACC + 4 * mt, ACC + 4 * mt + 1))
            l.append('v_cvt_pk_bf16_f32 v%d, v%d, v%d' % (d + 1, ACC + 4 * mt + 2, ACC + 4 * mt + 3))
            if not isq:
                l.append('ds_write_b64 v%d, %s offset:%d' % (vPW, vr(d, 2), (i >> 1) * 32768 + mt * 1024 + (i & 1) * 8))
            return l
        if tilemode == 0:
            c0, c1 = chain(0, '0'), chain(1, '0')
            for x in c0:
                a(x)
            hk(0)
            interleave(a, c1, red, [3, 3, 3, 2])
            a(bias(vr(DSQ), '0'))
            a(bias(vr(ACC), vr(ACC)))
            a(bias(vr(ACC + 4), vr(ACC + 4)))
            fstamp(4)
            if mid:
                mid()
            hk(1)
            fstamp(5)
            p0, p1 = post(0), post(1)
            interleave(a, chain(2, vr(DSQ)) + chain(3, vr(DSQ)), p0 + p1, [0, 1, 1, 1, 2, 2, 2, 2])
            hk(2)
            for x in post(2):
                a(x)
            hk(3)
            for x in post(3):
                a(x)
            fstamp(6)
        else:
            for x in red:
                a(x)
            a(bias(vr(DSQ), '0'))
            if mid:
                mid()
            hk(0)
            for x in chain(0, vr(DSQ)) + chain(1, vr(DSQ)):
                a(x)
            hk(1)
            interleave(a, chain(2, vr(DSQ)) + chain(3, vr(DSQ)), post(0) + post(1), [1, 1, 1, 1, 2, 2, 2, 2])
            hk(2)
            for x in post(2):
                a(x)
            hk(3)
            for x in post(3):
                a(x)

    SEQ = [('k', 0), ('k', 1), ('k', 2), ('k', 3), ('v', 0), ('v', 1)]

    for i in range(4):
        tile_read('k', i)
        if i == 0:
            a('s_barrier')
            stamp(3)
        if i == 3:
            stamp(4)
        if dist == 1:
            dma(*SEQ[i + 1], parts=(2, 3))
        elif dist == 0:
            dma(*SEQ[i + 1])
        if i == 1:
            a('s_or_b32 %s, %s, %s' % (sT, sR, sWAVE))
            a('s_cmp_eq_u32 %s, 0' % sT)
            a('s_cbranch_scc0 L_noscan2')
            a('s_mov_b32 %s, 0' % sNONCE)
            a.label('L_scan')
            a('s_add_u32 %s, %s, 1' % (sNONCE, sNONCE))
            a('v_cmp_eq_u32 vcc, %s, v11' % sNONCE)
            a('s_cbranch_vccnz L_scan')
            a('v_mov_b32 v11, %s' % sNONCE)
            a('s_mov_b64 exec, 1')
            a('buffer_store_dword v11, v10, %s, 0 offen sc1' % sDBG)
            a('s_mov_b64 exec, -1')
            a.label('L_noscan2')
            a.vm = []
        phi_tile(i, False, mid=(lambda: dma(*SEQ[i + 2], parts=(0, 1))) if dist == 1 else None, nxt=SEQ[i + 2] if dist == 2 else None)
    if dist == 1:
        dma('v', 1, (2, 3))
    elif dist == 0:
        vchunk(1)
    stamp(5)

    def phiread(p):
        for w in range(8):
            for x in range(2):
                a('ds_read_b128 %s, v%d offset:%d' % (vr(PHR + 8 * w + 4 * x), aP + x, p * 32768 + w * 4096))

    def zpart(p):
        for w in range(8):
            c = '0' if (p == 0 and w == 0) else vr(ACCZ)
            a('v_mfma_f32_16x16x32_bf16 %s, %s, %s, %s' % (vr(ACCZ), vr(PHR + 8 * w), vr(ONES), c))

    a('s_waitcnt lgkmcnt(0)')
    a('s_barrier')
    phiread(0)
    zpart(0)
    a('s_waitcnt vmcnt(%d) lgkmcnt(0)' % (issued[0] - mark['v0']))
    a('s_barrier')
    stamp(6)
    a('s_cmp_eq_u32 %s, 0' % sWAVE)
    a('s_cbranch_scc0 L_nofetch')
    a('buffer_load_dword v%d, v10, %s, 0 offen sc1' % (vNON, sDBG))
    a.label('L_nofetch')
    a.vm = []

    def gemm2(p, VR, hooks=None):
        for w in range(8):
            for u in range(2):
                a('ds_read_b64_tr_b16 %s, v%d offset:%d' % (vr(VR + 4 * w + 2 * u, 2), aV, p * 32768 + 2 * (w & 3) * 4096 + (2 * u + (w >> 2)) * 1024))
        for w in range(8):
            first = (p == 0 and w == 0)
            if hooks and w in hooks:
                hooks[w]()
            for x in range(2):
                c = '0' if first else vr(ACC2 + 4 * x)
                a('v_mfma_f32_16x16x32_bf16 %s, %s, %s, %s' % (vr(ACC2 + 4 * x), vr(PHR + 8 * w + 4 * x), vr(VR + 4 * w), c))

    VR = XT
    gemm2(0, VR)
    phiread(1)
    if q0mode == 0:
        dma('q', 0, (0,))
    a('s_barrier')
    zpart(1)
    if q0mode == 0:
        dma('q', 0, (1, 2, 3))
    else:
        dma('q', 0)
    a('buffer_store_dwordx4 %s, v%d, %s, %s offen sc1' % (vr(ACCZ), vZo, sWS, sOWNZ))
    issued[0] += 1
    stamp(7)
    a('s_cmp_eq_u32 %s, 0' % sWAVE)
    a('s_cbranch_scc0 L_non_done')
    a('s_mov_b32 %s, 0x40000' % sSPIN)
    a('s_waitcnt vmcnt(%d)' % (issued[0] - mark['v1']))
    a.label('L_non')
    a('v_readfirstlane_b32 %s, v%d' % (sNONCE, vNON))
    a('s_cmp_lg_u32 %s, 0' % sNONCE)
    a('s_cbranch_scc1 L_non_ok')
    a('s_sleep 1')
    a('buffer_load_dword v%d, v10, %s, 0 offen sc1' % (vNON, sDBG))
    a('s_waitcnt vmcnt(0)')
    a('s_sub_u32 %s, %s, 1' % (sSPIN, sSPIN))
    a('s_cmp_lg_u32 %s, 0' % sSPIN)
    a('s_cbranch_scc1 L_non')
    a.label('L_non_ok')
    a('v_mov_b32 v4, %d' % MISC)
    a('ds_write_b32 v4, v%d' % vNON)
    a('v_mov_b32 v5, 0')
    a('ds_write_b32 v4, v5 offset:4')
    a.label('L_non_done')
    a.vm = []
    a('s_waitcnt vmcnt(%d) lgkmcnt(0)' % (issued[0] - mark['v1']))
    a('s_barrier')
    stamp(8)
    a('v_mov_b32 v4, %d' % MISC)
    a('ds_read_b32 v%d, v4' % vNON)
    gemm2(1, VR)
    for x in range(2):
        a('v_cvt_pk_bf16_f32 v%d, v%d, v%d' % (P + 2 * x, ACC2 + 4 * x, ACC2 + 4 * x + 1))
        a('v_cvt_pk_bf16_f32 v%d, v%d, v%d' % (P + 2 * x + 1, ACC2 + 4 * x + 2, ACC2 + 4 * x + 3))
    a('buffer_store_dwordx4 %s, v%d, %s, %s offen sc1' % (vr(P), voffP, sWS, sOWN))
    issued[0] += 1
    mark['pub'] = issued[0]
    a('v_readfirstlane_b32 %s, v%d' % (sNONCE, vNON))
    stamp(9)
    qstamp()
    if dist == 1:
        dma('q', 1, (0, 1))
    if dist == 2:
        dma('q', 1)

    def flag():
        a('s_mov_b32 s12, %s' % sNONCE)
        a('s_waitcnt vmcnt(%d) lgkmcnt(0)' % (issued[0] - mark['pub']))
        a('s_atomic_swap s12, %s, %s' % (sWSB, sFME))

    def poll():
        a('s_mov_b32 %s, 0x40000' % sSPIN)
        a.label('L_poll')
        a('s_load_dwordx4 s[40:43], %s, %s glc' % (sWSB, sFLO))
        a('s_waitcnt lgkmcnt(0)')
        a('s_and_b64 s[48:49], s[40:41], s[42:43]')
        a('s_or_b64 s[40:41], s[40:41], s[42:43]')
        a('s_and_b32 s48, s48, s49')
        a('s_or_b32 s40, s40, s41')
        a('s_xor_b32 s48, s48, %s' % sNONCE)
        a('s_xor_b32 s40, s40, %s' % sNONCE)
        a('s_or_b32 s40, s40, s48')
        a('s_cbranch_scc0 L_poll_done')
        if sleep:
            a('s_sleep %d' % sleep)
        a('s_sub_u32 %s, %s, 1' % (sSPIN, sSPIN))
        a('s_cmp_lg_u32 %s, 0' % sSPIN)
        a('s_cbranch_scc1 L_poll')
        a.label('L_poll_done')

    def gather_issue():
        for i in range(3):
            a('s_add_u32 %s, s%d, %s' % (sT2, sP0 + i, sZD))
            a('buffer_load_dwordx4 %s, v%d, %s, s%d offen sc1' % (vr(G + 8 * i), voffP, sWS, sP0 + i))
            a('buffer_load_dwordx4 %s, v%d, %s, %s offen sc1' % (vr(G + 8 * i + 4), vZo, sWS, sT2))
        issued[0] += 6
        mark['g'] = issued[0]

    def gather_sum():
        a('s_waitcnt vmcnt(%d)' % (issued[0] - mark['g']))
        a.vm = []
        for i in range(3):
            a('v_mfma_f32_16x16x32_bf16 %s, %s, %s, %s' % (vr(ACC2), vr(SELR + 2), vr(G + 8 * i), vr(ACC2)))
            a('v_mfma_f32_16x16x32_bf16 %s, %s, %s, %s' % (vr(ACC2 + 4), vr(SELR), vr(G + 8 * i), vr(ACC2 + 4)))
            for x in range(4):
                a('v_add_f32 v%d, v%d, v%d' % (ACCZ + x, ACCZ + x, G + 8 * i + 4 + x))
        for x in range(2):
            a('v_cvt_pk_bf16_f32 v%d, v%d, v%d' % (P + 2 * x, ACC2 + 4 * x, ACC2 + 4 * x + 1))
            a('v_cvt_pk_bf16_f32 v%d, v%d, v%d' % (P + 2 * x + 1, ACC2 + 4 * x + 2, ACC2 + 4 * x + 3))
            a('ds_write_b64 v%d, %s' % (vXW + x, vr(P + 2 * x, 2)))
        a('v_cvt_pk_bf16_f32 v6, v%d, v%d' % (ACCZ, ACCZ + 1))
        a('v_cvt_pk_bf16_f32 v7, v%d, v%d' % (ACCZ + 2, ACCZ + 3))
        a('ds_write_b64 v%d, v[6:7] offset:4096' % vXz)
        a('v_mov_b32 v4, %d' % MISC)
        a('v_mov_b32 v5, 1')
        a('s_waitcnt lgkmcnt(0)')
        a('s_mov_b64 exec, 1')
        a('ds_add_u32 v4, v5 offset:4')
        a('s_mov_b64 exec, -1')

    def kv_wait():
        a('v_mov_b32 v4, %d' % MISC)
        a('v_add_u32 v5, %d, v%d' % (XB, voffP))
        a('s_mov_b32 %s, 0x100000' % sSPIN)
        a.label('L_xw')
        a('ds_read_b32 v6, v4 offset:4')
        a('s_waitcnt lgkmcnt(0)')
        a('v_readfirstlane_b32 %s, v6' % sT)
        a('s_cmp_ge_u32 %s, 8' % sT)
        a('s_cbranch_scc1 L_xw_done')
        a('s_sleep 1')
        a('s_sub_u32 %s, %s, 1' % (sSPIN, sSPIN))
        a('s_cmp_lg_u32 %s, 0' % sSPIN)
        a('s_cbranch_scc1 L_xw')
        a.label('L_xw_done')
        for b in (4, 0, 1, 2, 3):
            for ks in range(2):
                a('ds_read_b128 %s, v5 offset:%d' % (vr(KVB + 8 * b + 4 * ks), ks * KS + b * 1024))

    def out_mfma(t, A4):
        AZ = A4 + 16 if A4 == ACC else 212
        l = ['v_mfma_f32_16x16x32_bf16 %s, %s, %s, 0' % (vr(AZ), vr(PH + 8 * t), vr(KVB + 32)),
             'v_mfma_f32_16x16x32_bf16 %s, %s, %s, %s' % (vr(AZ), vr(PH + 8 * t + 4), vr(KVB + 36), vr(AZ))]
        for b in range(4):
            l.append('v_mfma_f32_16x16x32_bf16 %s, %s, %s, 0' % (vr(A4 + 4 * b), vr(PH + 8 * t), vr(KVB + 8 * b)))
            l.append('v_mfma_f32_16x16x32_bf16 %s, %s, %s, %s' % (vr(A4 + 4 * b), vr(PH + 8 * t + 4), vr(KVB + 8 * b + 4), vr(A4 + 4 * b)))
        return l

    def out_valu(t, A4):
        AZ = A4 + 16 if A4 == ACC else 212
        l = []
        for r in range(4):
            l.append('v_add_f32 v%d, v%d, v%d' % (RD + r, vEPS, AZ + r))
        for r in range(4):
            l.append('v_rcp_f32 v%d, v%d' % (RD + r, RD + r))
        l.append('s_mov_b32 %s, %d' % (sT, toff(t)))
        for r in range(4):
            for b in range(4):
                l.append('v_mul_f32 v%d, v%d, v%d' % (A4 + 4 * b + r, RD + r, A4 + 4 * b + r))
            l.append('v_cvt_pk_bf16_f32 v%d, v%d, v%d' % (4 + 2 * r, A4 + r, A4 + 4 + r))
            l.append('v_cvt_pk_bf16_f32 v%d, v%d, v%d' % (5 + 2 * r, A4 + 8 + r, A4 + 12 + r))
            l.append('buffer_store_dwordx2 %s, v%d, %s, %s offen offset:%d%s' % (vr(4 + 2 * r, 2), vO, sO, sT, r * 256, st_s))
        return l

    def out_tile(t, A4):
        for x in out_mfma(t, A4) + out_valu(t, A4):
            a(x)

    def out_all():
        sets = [ACC, A4b, ACC, A4b]
        for x in out_mfma(0, sets[0]):
            a(x)
        for t in range(4):
            if t < 3:
                interleave(a, out_mfma(t + 1, sets[t + 1]), out_valu(t, sets[t]), [2, 2, 2, 3, 4, 4, 4, 4, 4, 4])
            else:
                for x in out_valu(t, sets[t]):
                    a(x)

    A4b = 236
    def qtile(i, mid=None):
        qstamp()
        tile_read('q', i)
        qstamp()
        if i < 3 and dist < 2:
            dma('q', i + 1, (2, 3) if dist else (0, 1, 2, 3))
        if mid:
            mid()
            qstamp()
        phi_tile(i, True, mid=(lambda: dma('q', i + 2, (0, 1))) if (dist == 1 and i < 2) else None, nxt=('q', i + 2) if (dist == 2 and i < 2) else None)

    def pg():
        stamp(10)
        qstamp()
        poll()
        qstamp()
        gather_issue()

    def gs():
        stamp(11)
        gather_sum()

    def kw():
        qstamp()
        kv_wait()
        stamp(12)

    sSTATE = 's13'
    uid = [0]

    def check_flags():
        a('s_and_b64 s[48:49], s[40:41], s[42:43]')
        a('s_or_b64 s[40:41], s[40:41], s[42:43]')
        a('s_and_b32 s48, s48, s49')
        a('s_or_b32 s40, s40, s41')
        a('s_xor_b32 s48, s48, %s' % sNONCE)
        a('s_xor_b32 s40, s40, %s' % sNONCE)
        a('s_or_b32 s40, s40, s48')

    def g_issue():
        for i in range(3):
            a('s_add_u32 %s, s%d, %s' % (sT2, sP0 + i, sZD))
            a('buffer_load_dwordx4 %s, v%d, %s, s%d offen sc1' % (vr(G + 8 * i), voffP, sWS, sP0 + i))
            a('buffer_load_dwordx4 %s, v%d, %s, %s offen sc1' % (vr(G + 8 * i + 4), vZo, sWS, sT2))
        a.vm = []

    def g_sum():
        mark['g'] = issued[0]
        gather_sum()

    def async_poll():
        a('s_load_dwordx4 s[40:43], %s, %s glc' % (sWSB, sFLO))

    def step(first=False):
        u = uid[0]
        uid[0] += 1
        if not first:
            a('s_cmp_eq_u32 %s, 1' % sSTATE)
            a('s_cbranch_scc0 L_st%d_a' % u)
            g_sum()
            a('s_mov_b32 %s, 2' % sSTATE)
            a('s_branch L_st%d_z' % u)
            a.label('L_st%d_a' % u)
            a('s_cmp_eq_u32 %s, 0' % sSTATE)
            a('s_cbranch_scc0 L_st%d_z' % u)
        a('s_waitcnt lgkmcnt(0)')
        check_flags()
        a('s_cbranch_scc1 L_st%d_z' % u)
        g_issue()
        a('s_mov_b32 %s, 1' % sSTATE)
        a.label('L_st%d_z' % u)

    def qread_dual(i):
        u = uid[0]
        uid[0] += 1
        n = issued[0] - mark['q%d' % i]
        a('s_cmp_eq_u32 %s, 1' % sSTATE)
        a('s_cbranch_scc1 L_qd%d' % u)
        a('s_waitcnt vmcnt(%d)' % n)
        a.label('L_qd%d' % u)
        issued[0] += 6
        tile_read('q', i)
        issued[0] -= 6

    if plan == 7:
        a('s_mov_b32 %s, 0' % sSTATE)
        qstamp()
        tile_read('q', 0)
        qstamp()
        phi_tile(0, True, nxt=('q', 2), extra={flagpos: flag})
        qstamp()
        tile_read('q', 1)
        qstamp()
        phi_tile(1, True, nxt=('q', 3), extra={pollpos: async_poll})
        stamp(10)
        qstamp()
        step(first=True)
        qstamp()
        qread_dual(2)
        phi_tile(2, True, extra={pollpos: async_poll})
        qstamp()
        step()
        stamp(11)
        qstamp()
        qread_dual(3)
        phi_tile(3, True, extra={pollpos: async_poll})
        qstamp()
        step()
        a('s_cmp_eq_u32 %s, 2' % sSTATE)
        a('s_cbranch_scc1 L_fin_z')
        a('s_cmp_eq_u32 %s, 1' % sSTATE)
        a('s_cbranch_scc1 L_fin_sum')
        poll()
        g_issue()
        a.label('L_fin_sum')
        g_sum()
        a.label('L_fin_z')
        kw()
        qstamp()
        out_all()
    stamp(13)
    qstamp()
    if stamps:
        a('s_waitcnt vmcnt(0)')
        stamp(14)
        stamp_flush(15)
    a.label('L_end')
    a('s_endpgm')
    return HEADER % (LDS_TOTAL, NAME, NAME, NAME) + a.text() + FOOTER % NAME


if __name__ == '__main__':
    import argparse
    ap = argparse.ArgumentParser()
    ap.add_argument('-o', default='cdna_kernels/%s.s' % NAME)
    ap.add_argument('--stamps', type=int, nargs='?', const=1, default=0)
    ap.add_argument('--st', default='nt')
    ap.add_argument('--sleep', type=int, default=1)
    ap.add_argument('--plan', type=int, default=7)
    ap.add_argument('--dist', type=int, default=2)
    ap.add_argument('--tilemode', type=int, default=1)
    ap.add_argument('--flagpos', type=int, default=2)
    ap.add_argument('--pollpos', type=int, default=0)
    ap.add_argument('--q0mode', type=int, default=0)
    ap.add_argument('--rowmap', type=int, default=1)
    args = ap.parse_args()
    open(args.o, 'w').write(gen(args.stamps, args.st, args.sleep, args.plan, args.dist, args.tilemode, args.flagpos, args.pollpos, args.q0mode, args.rowmap))
```

```python
import struct, sys, math
from asmdsl import Asm
from gen2 import HEADER, FOOTER, NAME, vr, fh, interleave, SCALE, LOG2E, C1


def gen(stamps=0, stflag='nt', sleep=1, rowmap=0, qplan=0):
    a = Asm()
    VB = 0
    PHI = 65536
    OMB = 131072
    XB = PHI
    KS = 9216
    MISC = PHI + 20480
    LDS_TOTAL = 163840
    PART = 8704
    FL = 8 * PART
    HSTRIDE = FL + 1024
    sK, sV, sQ, sO, sOM, sWS, sDBG, sST = 's[24:27]', 's[28:31]', 's[32:35]', 's[36:39]', 's[40:43]', 's[44:47]', 's[48:51]', 's[52:55]'
    sWSB = 's[44:45]'
    sL, sOFF, sHEAD, sR, sWAVE, sHF = 's18', 's19', 's20', 's21', 's22', 's23'
    sT, sT2, sW4, sP8 = 's56', 's57', 's58', 's59'
    sSEL, sSPIN, sNONCE = 's3', 's66', 's67'
    sCB, sMH = 's68', 's69'
    sOWN, sOWNZ, sFLO, sFME, sZD, sOTH = 's4', 's5', 's6', 's7', 's8', 's100'
    sP0 = 9
    st_s = (' ' + stflag) if stflag else ''
    RS = 131072 if rowmap else 32768
    NREC = 3 * RS + 32768

    def stamp(idx):
        if stamps:
            a('s_memrealtime s[%d:%d]' % (70 + 2 * idx, 71 + 2 * idx))

    def stamp_flush(n):
        if stamps:
            a('s_waitcnt lgkmcnt(0)')
            a('s_lshl_b32 %s, %s, 3' % (sT, sL))
            a('s_add_u32 %s, %s, %s' % (sT, sT, sWAVE))
            a('s_lshl_b32 %s, %s, 6' % (sT, sT))
            a('s_mov_b64 exec, 1')
            for i in range(n):
                a('v_mov_b32 v1, s%d' % (70 + 2 * i))
                a('v_mov_b32 v2, %d' % (4 * i))
                a('buffer_store_dword v1, v2, %s, %s offen' % (sST, sT))
            a('s_mov_b64 exec, -1')

    def srd(base, lo, hi, off, nbytes):
        if off is None:
            a('s_mov_b32 s%d, s%d' % (base, lo))
            a('s_mov_b32 s%d, s%d' % (base + 1, hi))
        else:
            a('s_add_u32 s%d, s%d, %s' % (base, lo, off))
            a('s_addc_u32 s%d, s%d, 0' % (base + 1, hi))
        a('s_mov_b32 s%d, 0x%x' % (base + 2, nbytes))
        a('s_mov_b32 s%d, 0x00020000' % (base + 3))

    vMSK = 3
    vS, aR, aR2, vV, vPW, vLA, vEPS = 12, 16, 20, 24, 25, 26, 27
    vBETA, vO, aV, vNON = 28, 29, 30, 31
    OM, XT, ACC, PH = 32, 96, 112, 132
    PHR, ACC2, ACCZ = 132, 212, 220
    G, ACC3 = 148, 188
    KVB = 148
    vXW, vXz, voffP, vZo, v075, aP = 204, 206, 207, 208, 209, 210
    SQ, DSQ, NEG1, ONES, P = 224, 228, 232, 236, 240
    SELR = 244
    RD = 252
    GR = ACC + 16
    sMASK = [('s[%d:%d]' % (b, b + 1)) for b in (60, 62, 64, 14)]

    a('s_cmp_ge_u32 s2, 256')
    a('s_cbranch_scc1 L_end')
    stamp(0)
    a('s_load_dwordx8 s[4:11], s[0:1], 0')
    a('s_load_dwordx4 s[12:15], s[0:1], 32')
    a('s_load_dwordx2 s[16:17], s[0:1], 48')
    a('s_and_b32 %s, s2, 7' % sL)
    a('s_lshl_b32 %s, %s, 5' % (sL, sL))
    a('s_lshr_b32 %s, s2, 3' % sOFF)
    a('s_add_u32 %s, %s, %s' % (sL, sL, sOFF))
    a('s_lshr_b32 %s, %s, 1' % (sR, sL))
    a('s_and_b32 %s, %s, 3' % (sR, sR))
    if rowmap:
        a('s_lshr_b32 %s, %s, 3' % (sOFF, sL))
        a('s_lshl_b32 %s, %s, 19' % (sOFF, sOFF))
        a('s_lshl_b32 %s, %s, 15' % (sT, sR))
        a('s_add_u32 %s, %s, %s' % (sOFF, sOFF, sT))
    else:
        a('s_lshr_b32 %s, %s, 1' % (sOFF, sL))
        a('s_lshl_b32 %s, %s, 17' % (sOFF, sOFF))
    a('s_and_b32 %s, %s, 1' % (sHF, sL))
    a('v_lshrrev_b32 v1, 6, v0')
    a('v_and_b32 v0, 63, v0')
    a('v_readfirstlane_b32 %s, v1' % sWAVE)
    a('v_and_b32 v1, 15, v0')
    a('v_lshrrev_b32 v2, 4, v0')
    a('s_lshl_b32 %s, %s, 12' % (sW4, sWAVE))
    a('v_lshlrev_b32 v3, 8, v1')
    a('v_lshl_add_u32 v3, v2, 4, v3')
    a('s_lshr_b32 %s, %s, 1' % (sT, sWAVE))
    a('s_lshl_b32 %s, %s, 12' % (sT, sT))
    a('s_and_b32 %s, %s, 1' % (sT2, sWAVE))
    a('s_lshl_b32 %s, %s, 7' % (sT2, sT2))
    a('s_add_u32 %s, %s, %s' % (sT, sT, sT2))
    a('v_add_u32 v3, %s, v3' % sT)
    a('v_lshlrev_b32 v4, 8, v2')
    a('v_add_u32 v4, %s, v4' % sW4)
    a('v_xor_b32 v5, v1, v2')
    for n in range(4):
        a('v_xor_b32 v6, %d, v5' % (4 * n))
        a('v_lshl_add_u32 v%d, v6, 4, v4' % (vS + n))
    a('s_lshl_b32 s2, %s, 11' % sWAVE)
    a('s_waitcnt lgkmcnt(0)')
    stamp(1)
    srd(40, 10, 11, None, 16384)
    srd(24, 6, 7, sOFF, NREC)
    issued = [0]
    mark = {}
    for j in range(2):
        a('buffer_load_dwordx4 %s, v3, %s, 0 offen offset:%d' % (vr(XT + 4 * j), sOM, j * 64))
    issued[0] += 2
    mark['om'] = issued[0]
    a.vm = []

    SLOT = {('k', 0): VB + 32768, ('k', 1): VB, ('k', 2): PHI + 32768, ('k', 3): VB + 32768,
            ('q', 0): OMB, ('q', 1): VB}

    def dma(name, i, parts=(0, 1, 2, 3)):
        if name == 'v':
            for n in parts:
                a('s_mov_b32 %s, %d' % (sT, (2 * i + (n >> 1)) * RS + (n & 1) * 16384))
                a('s_add_u32 m0, %s, %d' % (sW4, VB + i * 32768 + n * 1024))
                a('buffer_load_dwordx4 v%d, %s, %s offen nt lds' % (vV, sV, sT))
        else:
            a('s_mov_b32 %s, %d' % (sT, i * (RS if name == 'k' else 32768)))
            a('s_add_u32 m0, %s, %d' % (sW4, SLOT[(name, i)]))
            for n in parts:
                a('buffer_load_dwordx4 v%d, %s, %s offen offset:%d nt lds' % (vS + n, sK if name == 'k' else sQ, sT, n * 1024))
        issued[0] += len(parts)
        mark[name + str(i)] = issued[0]

    dma('k', 0)
    stamp(2)
    srd(28, 8, 9, sOFF, NREC)
    a('s_lshl_b32 %s, %s, 16' % (sT, sL))
    srd(32, 4, 5, sT, 65536)
    srd(36, 12, 13, sT, 65536)
    a('s_lshr_b32 %s, %s, 3' % (sHEAD, sL))
    a('s_and_b32 %s, %s, 7' % (sP8, sL))
    a('s_mul_i32 %s, %s, %d' % (sT, sHEAD, HSTRIDE))
    srd(44, 16, 17, sT, HSTRIDE)
    srd(48, 14, 15, None, 256)
    if stamps:
        a('s_mov_b32 %s, 0x4000000' % sT)
        srd(52, 16, 17, sT, 256 * 8 * 64)
    a('s_lshl_b32 %s, %s, 2' % (sT, sHEAD))
    a('v_mov_b32 v10, %s' % sT)
    a('s_or_b32 %s, %s, %s' % (sT, sP8, sWAVE))
    a('s_cmp_eq_u32 %s, 0' % sT)
    a('s_cbranch_scc0 L_noscan1')
    a('v_lshrrev_b32 v6, 3, v0')
    a('v_and_b32 v7, 7, v0')
    a('v_lshlrev_b32 v7, 2, v7')
    a('v_lshl_add_u32 v6, v6, 7, v7')
    a('s_mov_b32 %s, %d' % (sT, FL))
    a('buffer_load_dword v11, v6, %s, %s offen sc1' % (sWS, sT))
    a.label('L_noscan1')
    a.vm = []
    a('s_mov_b32 %s, 0x07060302' % sSEL)
    for r, b in enumerate((60, 62, 64, 14)):
        m = sum(1 << (20 * q + r) for q in range(4))
        a('s_mov_b32 s%d, 0x%x' % (b, m & 0xffffffff))
        a('s_mov_b32 s%d, 0x%x' % (b + 1, m >> 32))
    a('s_and_b32 %s, %s, 3' % (sCB, sWAVE))
    a('s_lshr_b32 %s, %s, 2' % (sMH, sWAVE))
    a('s_lshl_b32 %s, %s, 7' % (sHF, sHF))
    a('v_lshlrev_b32 v4, 8, v1')
    a('v_add_u32 v4, %s, v4' % sW4)
    for kk in range(4):
        a('v_xor_b32 v6, %d, v5' % (4 * kk))
        a('v_lshl_add_u32 v%d, v6, 4, v4' % (aR + kk))
        a('v_add_u32 v%d, 0x18000, v%d' % (aR2 + kk, aR + kk))
    a('v_lshrrev_b32 v3, 3, v0')
    a('v_and_b32 v4, 6, v3')
    a('v_and_b32 v5, 7, v0')
    a('v_xor_b32 v4, v4, v5')
    a('v_lshlrev_b32 v4, 4, v4')
    a('v_lshl_add_u32 v4, v3, 8, v4')
    a('s_add_u32 %s, s2, %s' % (sT, sHF))
    a('v_add_u32 v%d, %s, v4' % (vV, sT))
    a('v_lshlrev_b32 v4, 10, v2')
    a('v_lshl_add_u32 v4, v1, 4, v4')
    a('v_add_u32 v%d, %s, v4' % (vO, sW4))
    a('v_lshlrev_b32 v%d, 4, v0' % voffP)
    a('s_add_u32 %s, %s, %d' % (sT, sW4, PHI))
    a('v_add_u32 v%d, %s, v%d' % (vPW, sT, voffP))
    a('v_add_u32 v%d, %d, v%d' % (vLA, OMB, voffP))
    a('v_mov_b32 v%d, %s' % (vEPS, fh(1e-6)))
    a('v_mov_b32 v%d, %s' % (vBETA, fh(0.5 * SCALE * C1)))
    a('v_mov_b32 v%d, 0x3f400000' % v075)
    for i in range(4):
        a('v_mov_b32 v%d, 0xbf80bf80' % (NEG1 + i))
        a('v_mov_b32 v%d, 0x3f803f80' % (ONES + i))
    a('v_mov_b32 v%d, 0' % (SQ + 2))
    a('v_mov_b32 v%d, 0' % (SQ + 3))
    a('v_lshrrev_b32 v3, 2, v0')
    a('v_and_b32 v4, 6, v3')
    a('v_bfe_u32 v5, v0, 1, 1')
    a('s_lshl_b32 %s, %s, 1' % (sT, sCB))
    a('v_add_u32 v5, %s, v5' % sT)
    a('v_xor_b32 v4, v4, v5')
    a('v_lshlrev_b32 v4, 4, v4')
    a('v_and_b32 v5, 7, v3')
    a('v_lshl_add_u32 v4, v5, 7, v4')
    a('v_lshrrev_b32 v5, 5, v0')
    a('v_lshl_add_u32 v4, v5, 12, v4')
    a('v_and_b32 v5, 1, v0')
    a('v_lshl_add_u32 v%d, v5, 3, v4' % aV)
    a('v_and_b32 v4, 7, v1')
    a('v_lshlrev_b32 v4, 10, v4')
    a('v_lshl_add_u32 v4, v2, 8, v4')
    a('v_lshrrev_b32 v5, 3, v1')
    a('v_lshl_add_u32 v4, v5, 4, v4')
    for x in range(2):
        a('s_and_b32 %s, %s, 1' % (sT, sCB))
        a('s_xor_b32 %s, %s, %d' % (sT, sT, x))
        a('s_lshl_b32 %s, %s, 1' % (sT2, sMH))
        a('s_add_u32 %s, %s, %s' % (sT2, sT2, sT))
        a('s_lshl_b32 %s, %s, 10' % (sT2, sT2))
        a('s_add_u32 %s, %s, %d' % (sT2, sT2, PHI))
        a('v_add_u32 v%d, %s, v%d' % (aP + x, sT2, voffP))
        a('s_lshl_b32 %s, %s, 3' % (sT, sT))
        a('s_mul_i32 %s, %s, %d' % (sT2, sMH, KS))
        a('s_add_u32 %s, %s, %s' % (sT, sT, sT2))
        a('s_add_u32 %s, %s, %d' % (sT, sT, XB))
        if x == 0:
            a('v_add_u32 v%d, %s, v%d' % (vXz, sT, voffP))
        a('s_lshl_b32 %s, %s, 5' % (sT2, sCB))
        a('s_add_u32 %s, %s, %s' % (sT, sT, sT2))
        a('s_add_u32 %s, %s, %s' % (sT, sT, sHF))
        a('v_add_u32 v%d, %s, v4' % (vXW + x, sT))
    a('v_lshlrev_b32 v%d, 4, v2' % vZo)
    for k in (0, 1, 4, 5):
        a('v_mov_b32 v%d, 0' % (SELR + k))
    a('v_mov_b32 v4, 0x3f80')
    a('v_mov_b32 v5, 0x3f800000')
    a('v_cndmask_b32 v%d, 0, v4, %s' % (SELR + 2, sMASK[0]))
    a('v_cndmask_b32 v%d, v%d, v5, %s' % (SELR + 2, SELR + 2, sMASK[1]))
    a('v_cndmask_b32 v%d, 0, v4, %s' % (SELR + 3, sMASK[2]))
    a('v_cndmask_b32 v%d, v%d, v5, %s' % (SELR + 3, SELR + 3, sMASK[3]))
    a('s_mul_i32 %s, %s, %d' % (sT, sP8, PART))
    a('s_lshl_b32 %s, %s, 10' % (sT2, sWAVE))
    a('s_add_u32 %s, %s, %s' % (sOWN, sT, sT2))
    for i in range(3):
        a('s_add_u32 %s, %s, %d' % (sOWNZ, sP8, 2 * (i + 1)))
        a('s_and_b32 %s, %s, 7' % (sOWNZ, sOWNZ))
        a('s_mul_i32 %s, %s, %d' % (sOWNZ, sOWNZ, PART))
        a('s_add_u32 s%d, %s, %s' % (sP0 + i, sOWNZ, sT2))
    a('s_and_b32 %s, %s, 1' % (sOTH, sP8))
    a('s_xor_b32 %s, %s, 1' % (sOTH, sOTH))
    a('s_mul_i32 %s, %s, %d' % (sOTH, sOTH, PART))
    a('s_add_u32 %s, %s, %s' % (sOTH, sOTH, sT2))
    a('s_lshl_b32 %s, %s, 6' % (sOWNZ, sWAVE))
    a('s_add_u32 %s, %s, %s' % (sOWNZ, sOWNZ, sT))
    a('s_add_u32 %s, %s, 8192' % (sOWNZ, sOWNZ))
    a('s_sub_u32 %s, %s, %s' % (sZD, sOWNZ, sOWN))
    a('s_lshl_b32 %s, %s, 7' % (sFLO, sWAVE))
    a('s_add_u32 %s, %s, %d' % (sFLO, sFLO, FL))
    a('s_lshl_b32 %s, %s, 2' % (sFME, sP8))
    a('s_add_u32 %s, %s, %s' % (sFME, sFME, sFLO))
    a('v_mov_b32 v9, %s' % fh(C1))
    a('v_mov_b32 v%d, 0xffff0000' % vMSK)
    a('v_add_u32 v8, s2, v%d' % vLA)
    a('s_waitcnt vmcnt(%d)' % (issued[0] - mark['om']))
    for x in range(8):
        a('v_lshlrev_b32 v4, 16, v%d' % (XT + x))
        a('v_and_b32 v5, v%d, v%d' % (vMSK, XT + x))
        a('v_mul_f32 v4, v9, v4')
        a('v_mul_f32 v5, v9, v5')
        a('v_cvt_pk_bf16_f32 v%d, v4, v5' % (XT + 8 + x))
    a('ds_write_b128 v8, %s' % vr(XT + 8))
    a('ds_write_b128 v8, %s offset:1024' % vr(XT + 12))
    dma('k', 1)
    a('s_waitcnt lgkmcnt(0)')
    a('s_barrier')
    for f in range(16):
        a('ds_read_b128 %s, v%d offset:%d' % (vr(OM + 4 * f), vLA, f * 1024))

    def tile_read(name, i):
        a('s_waitcnt vmcnt(%d)' % (issued[0] - mark[name + str(i)]))
        off = SLOT[(name, i)]
        for kk in range(4):
            a('ds_read_b128 %s, v%d offset:%d' % (vr(XT + 4 * kk), (aR if off < 65536 else aR2) + kk, off if off < 65536 else off - 0x18000))
        a('s_waitcnt lgkmcnt(0)')

    def phi_tile(i, isq, nxt=None, extra=None):
        X = XT

        def hk(n):
            if extra and n in extra:
                extra[n]()
            if nxt:
                dma(nxt[0], nxt[1], (n,))
        for kk in range(4):
            a('v_mfma_f32_16x16x32_bf16 %s, %s, %s, %s' % (vr(GR), vr(X + 4 * kk), vr(X + 4 * kk), '0' if kk == 0 else vr(GR)))

        def chain(mt):
            l = []
            for kk in range(4):
                c = vr(DSQ) if kk == 0 else vr(ACC + 4 * mt)
                if isq:
                    l.append('v_mfma_f32_16x16x32_bf16 %s, %s, %s, %s' % (vr(ACC + 4 * mt), vr(OM + 16 * mt + 4 * kk), vr(X + 4 * kk), c))
                else:
                    l.append('v_mfma_f32_16x16x32_bf16 %s, %s, %s, %s' % (vr(ACC + 4 * mt), vr(X + 4 * kk), vr(OM + 16 * mt + 4 * kk), c))
            return l

        def post(mt):
            l = []
            for r in range(4):
                l.append('v_exp_f32 v%d, v%d' % (ACC + 4 * mt + r, ACC + 4 * mt + r))
            for r in range(4):
                l.append('v_add_f32 v%d, v%d, v%d' % (ACC + 4 * mt + r, vEPS, ACC + 4 * mt + r))
            d = PH + 8 * i + 2 * mt if isq else 6 + 2 * (mt & 1)
            l.append('v_cvt_pk_bf16_f32 v%d, v%d, v%d' % (d, ACC + 4 * mt, ACC + 4 * mt + 1))
            l.append('v_cvt_pk_bf16_f32 v%d, v%d, v%d' % (d + 1, ACC + 4 * mt + 2, ACC + 4 * mt + 3))
            if not isq:
                l.append('ds_write_b64 v%d, %s offset:%d' % (vPW, vr(d, 2), (i >> 1) * 32768 + mt * 1024 + (i & 1) * 8))
            return l
        for x in ['v_cndmask_b32 v4, 0, v%d, %s' % (GR, sMASK[0]),
                  'v_cndmask_b32 v4, v4, v%d, %s' % (GR + 1, sMASK[1]),
                  'v_cndmask_b32 v4, v4, v%d, %s' % (GR + 2, sMASK[2]),
                  'v_cndmask_b32 v4, v4, v%d, %s' % (GR + 3, sMASK[3]),
                  'v_fma_f32 v4, v4, v%d, v%d' % (vBETA, v075),
                  'v_and_b32 v5, v%d, v4' % vMSK,
                  'v_sub_f32 v5, v4, v5',
                  'v_and_b32 v6, v%d, v5' % vMSK,
                  'v_perm_b32 v%d, v5, v4, %s' % (SQ, sSEL),
                  'v_sub_f32 v6, v5, v6',
                  'v_lshrrev_b32 v%d, 16, v6' % (SQ + 1)]:
            a(x)
        if isq:
            a('v_mfma_f32_16x16x32_bf16 %s, %s, %s, 0' % (vr(DSQ), vr(NEG1), vr(SQ)))
        else:
            a('v_mfma_f32_16x16x32_bf16 %s, %s, %s, 0' % (vr(DSQ), vr(SQ), vr(NEG1)))
        hk(0)
        for x in chain(0) + chain(1):
            a(x)
        hk(1)
        interleave(a, chain(2) + chain(3), post(0) + post(1), [1, 1, 1, 1, 2, 2, 2, 2])
        hk(2)
        for x in post(2):
            a(x)
        hk(3)
        for x in post(3):
            a(x)

    SEQ = [('k', 0), ('k', 1), ('k', 2), ('k', 3), ('v', 0), ('v', 1)]
    for i in range(4):
        tile_read('k', i)
        if i == 0:
            a('s_barrier')
            stamp(3)
        if i == 3:
            stamp(4)
        if i == 1:
            a('s_or_b32 %s, %s, %s' % (sT, sP8, sWAVE))
            a('s_cmp_eq_u32 %s, 0' % sT)
            a('s_cbranch_scc0 L_noscan2')
            a('s_mov_b32 %s, 0' % sNONCE)
            a.label('L_scan')
            a('s_add_u32 %s, %s, 1' % (sNONCE, sNONCE))
            a('v_cmp_eq_u32 vcc, %s, v11' % sNONCE)
            a('s_cbranch_vccnz L_scan')
            a('v_mov_b32 v11, %s' % sNONCE)
            a('s_mov_b64 exec, 1')
            a('buffer_store_dword v11, v10, %s, 0 offen sc1' % sDBG)
            a('s_mov_b64 exec, -1')
            a.label('L_noscan2')
            a.vm = []
        phi_tile(i, False, nxt=SEQ[i + 2])
    stamp(5)

    def phiread(p):
        for w in range(8):
            for x in range(2):
                a('ds_read_b128 %s, v%d offset:%d' % (vr(PHR + 8 * w + 4 * x), aP + x, p * 32768 + w * 4096))

    def zpart(p):
        for w in range(8):
            c = '0' if (p == 0 and w == 0) else vr(ACCZ)
            a('v_mfma_f32_16x16x32_bf16 %s, %s, %s, %s' % (vr(ACCZ), vr(PHR + 8 * w), vr(ONES), c))

    def gemm2(p, VR):
        for w in range(8):
            for u in range(2):
                a('ds_read_b64_tr_b16 %s, v%d offset:%d' % (vr(VR + 4 * w + 2 * u, 2), aV, p * 32768 + 2 * (w & 3) * 4096 + (2 * u + (w >> 2)) * 1024))
        for w in range(8):
            first = (p == 0 and w == 0)
            for x in range(2):
                c = '0' if first else vr(ACC2 + 4 * x)
                a('v_mfma_f32_16x16x32_bf16 %s, %s, %s, %s' % (vr(ACC2 + 4 * x), vr(PHR + 8 * w + 4 * x), vr(VR + 4 * w), c))

    a('s_waitcnt lgkmcnt(0)')
    a('s_barrier')
    phiread(0)
    zpart(0)
    a('s_waitcnt vmcnt(%d) lgkmcnt(0)' % (issued[0] - mark['v0']))
    a('s_barrier')
    stamp(6)
    a('s_cmp_eq_u32 %s, 0' % sWAVE)
    a('s_cbranch_scc0 L_nofetch')
    a('buffer_load_dword v%d, v10, %s, 0 offen sc1' % (vNON, sDBG))
    a.label('L_nofetch')
    a.vm = []
    VR = XT
    gemm2(0, VR)
    phiread(1)
    a('s_barrier')
    zpart(1)
    a('buffer_store_dwordx4 %s, v%d, %s, %s offen sc1' % (vr(ACCZ), vZo, sWS, sOWNZ))
    issued[0] += 1
    QA = {0: (0, 1), 1: (0, 1, 2, 3), 2: (0, 1), 3: (0,), 4: (0, 1, 2)}[qplan]
    dma('q', 0, QA)
    stamp(7)
    a('s_cmp_eq_u32 %s, 0' % sWAVE)
    a('s_cbranch_scc0 L_non_done')
    a('s_mov_b32 %s, 0x40000' % sSPIN)
    a('s_waitcnt vmcnt(%d)' % (issued[0] - mark['v1']))
    a.label('L_non')
    a('v_readfirstlane_b32 %s, v%d' % (sNONCE, vNON))
    a('s_cmp_lg_u32 %s, 0' % sNONCE)
    a('s_cbranch_scc1 L_non_ok')
    a('s_sleep 1')
    a('buffer_load_dword v%d, v10, %s, 0 offen sc1' % (vNON, sDBG))
    a('s_waitcnt vmcnt(0)')
    a('s_sub_u32 %s, %s, 1' % (sSPIN, sSPIN))
    a('s_cmp_lg_u32 %s, 0' % sSPIN)
    a('s_cbranch_scc1 L_non')
    a.label('L_non_ok')
    a('v_mov_b32 v4, %d' % MISC)
    a('ds_write_b32 v4, v%d' % vNON)
    a.label('L_non_done')
    a.vm = []
    a('s_waitcnt vmcnt(%d) lgkmcnt(0)' % (issued[0] - mark['v1']))
    a('s_barrier')
    stamp(8)
    a('v_mov_b32 v4, %d' % MISC)
    a('ds_read_b32 v%d, v4' % vNON)
    gemm2(1, VR)
    for x in range(2):
        a('v_cvt_pk_bf16_f32 v%d, v%d, v%d' % (P + 2 * x, ACC2 + 4 * x, ACC2 + 4 * x + 1))
        a('v_cvt_pk_bf16_f32 v%d, v%d, v%d' % (P + 2 * x + 1, ACC2 + 4 * x + 2, ACC2 + 4 * x + 3))
    a('buffer_store_dwordx4 %s, v%d, %s, %s offen sc1' % (vr(P), voffP, sWS, sOWN))
    issued[0] += 1
    mark['pub'] = issued[0]
    a('v_readfirstlane_b32 %s, v%d' % (sNONCE, vNON))
    stamp(9)

    def flag():
        a('s_mov_b32 s12, %s' % sNONCE)
        a('s_waitcnt vmcnt(%d) lgkmcnt(0)' % (issued[0] - mark['pub']))
        a('s_atomic_swap s12, %s, %s' % (sWSB, sFME))

    def poll():
        a('s_mov_b32 %s, 0x40000' % sSPIN)
        a.label('L_poll')
        a('s_load_dwordx8 s[24:31], %s, %s glc' % (sWSB, sFLO))
        a('s_waitcnt lgkmcnt(0)')
        a('s_and_b64 s[40:41], s[24:25], s[26:27]')
        a('s_and_b64 s[42:43], s[28:29], s[30:31]')
        a('s_or_b64 s[24:25], s[24:25], s[26:27]')
        a('s_or_b64 s[28:29], s[28:29], s[30:31]')
        a('s_and_b64 s[40:41], s[40:41], s[42:43]')
        a('s_or_b64 s[24:25], s[24:25], s[28:29]')
        a('s_and_b32 s40, s40, s41')
        a('s_or_b32 s24, s24, s25')
        a('s_xor_b32 s40, s40, %s' % sNONCE)
        a('s_xor_b32 s24, s24, %s' % sNONCE)
        a('s_or_b32 s24, s24, s40')
        a('s_cbranch_scc0 L_poll_done')
        if sleep:
            a('s_sleep %d' % sleep)
        a('s_sub_u32 %s, %s, 1' % (sSPIN, sSPIN))
        a('s_cmp_lg_u32 %s, 0' % sSPIN)
        a('s_cbranch_scc1 L_poll')
        a.label('L_poll_done')

    def g_issue():
        for i in range(3):
            a('buffer_load_dwordx4 %s, v%d, %s, s%d offen sc1' % (vr(G + 4 * i), voffP, sWS, sP0 + i))
        for i in range(4):
            a('s_add_u32 %s, %s, %d' % (sT2, sOTH, 2 * i * PART))
            a('buffer_load_dwordx4 %s, v%d, %s, %s offen sc1' % (vr(G + 12 + 4 * i), voffP, sWS, sT2))
        for i in range(3):
            a('s_add_u32 %s, s%d, %s' % (sT2, sP0 + i, sZD))
            a('buffer_load_dwordx4 %s, v%d, %s, %s offen sc1' % (vr(G + 28 + 4 * i), vZo, sWS, sT2))
        issued[0] += 10
        mark['g'] = issued[0]
        a.vm = []

    def g_sum():
        base = issued[0] - mark['g']
        for i in range(7):
            a('s_waitcnt vmcnt(%d)' % (base + 9 - i))
            D = ACC2 if i < 3 else ACC3
            for x, sel in ((0, SELR + 2), (1, SELR)):
                c = '0' if i == 3 else vr(D + 4 * x)
                a('v_mfma_f32_16x16x32_bf16 %s, %s, %s, %s' % (vr(D + 4 * x), vr(sel), vr(G + 4 * i), c))
        a('v_xor_b32 v8, 128, v%d' % vXW)
        a('v_xor_b32 v9, 128, v%d' % (vXW + 1))
        a('s_waitcnt vmcnt(%d)' % base)
        for i in range(3):
            for x in range(4):
                a('v_add_f32 v%d, v%d, v%d' % (ACCZ + x, ACCZ + x, G + 28 + 4 * i + x))
        for x in range(2):
            a('v_cvt_pk_bf16_f32 v%d, v%d, v%d' % (P + 2 * x, ACC2 + 4 * x, ACC2 + 4 * x + 1))
            a('v_cvt_pk_bf16_f32 v%d, v%d, v%d' % (P + 2 * x + 1, ACC2 + 4 * x + 2, ACC2 + 4 * x + 3))
            a('ds_write_b64 v%d, %s' % (vXW + x, vr(P + 2 * x, 2)))
        a('v_cvt_pk_bf16_f32 v6, v%d, v%d' % (ACCZ, ACCZ + 1))
        a('v_cvt_pk_bf16_f32 v7, v%d, v%d' % (ACCZ + 2, ACCZ + 3))
        a('ds_write_b64 v%d, v[6:7] offset:8192' % vXz)
        for x in range(2):
            a('v_cvt_pk_bf16_f32 v%d, v%d, v%d' % (ONES + 2 * x, ACC3 + 4 * x, ACC3 + 4 * x + 1))
            a('v_cvt_pk_bf16_f32 v%d, v%d, v%d' % (ONES + 2 * x + 1, ACC3 + 4 * x + 2, ACC3 + 4 * x + 3))
            a('ds_write_b64 v%d, %s' % (8 + x, vr(ONES + 2 * x, 2)))
        a('v_add_u32 v5, %d, v%d' % (XB, voffP))
        a('s_waitcnt lgkmcnt(0)')
        a('s_barrier')
        for b in (8, 0, 1, 2, 3, 4, 5, 6, 7):
            for ks in range(2):
                a('ds_read_b128 %s, v5 offset:%d' % (vr(KVB + 8 * b + 4 * ks), ks * KS + b * 1024))

    def out_mfma(t, A4):
        l = []
        for b in (8, 0, 1, 2, 3, 4, 5, 6, 7):
            l.append('v_mfma_f32_16x16x32_bf16 %s, %s, %s, 0' % (vr(A4 + 4 * b), vr(PH + 8 * t), vr(KVB + 8 * b)))
            l.append('v_mfma_f32_16x16x32_bf16 %s, %s, %s, %s' % (vr(A4 + 4 * b), vr(PH + 8 * t + 4), vr(KVB + 8 * b + 4), vr(A4 + 4 * b)))
        return l

    def out_valu(t, A4):
        l = []
        for r in range(4):
            l.append('v_add_f32 v%d, v%d, v%d' % (RD + r, vEPS, A4 + 32 + r))
        for r in range(4):
            l.append('v_rcp_f32 v%d, v%d' % (RD + r, RD + r))
        l.append('s_mov_b32 %s, %d' % (sT, t * 32768))
        for r in range(4):
            O = 4 + 4 * (r & 1)
            for b in range(8):
                l.append('v_mul_f32 v%d, v%d, v%d' % (A4 + 4 * b + r, RD + r, A4 + 4 * b + r))
            for k in range(4):
                l.append('v_cvt_pk_bf16_f32 v%d, v%d, v%d' % (O + k, A4 + 8 * k + r, A4 + 8 * k + 4 + r))
            l.append('buffer_store_dwordx4 %s, v%d, %s, %s offen offset:%d%s' % (vr(O), vO, sO, sT, r * 256, st_s))
        return l

    rest0 = tuple(n for n in range(4) if n not in QA)
    if rest0:
        dma('q', 0, rest0)
    if qplan in (0, 3, 4):
        flag()
        dma('q', 1, (0, 1))
        tile_read('q', 0)
        dma('q', 1, (2, 3))
        phi_tile(0, True)
        stamp(10)
        poll()
        g_issue()
        stamp(11)
        tile_read('q', 1)
        phi_tile(1, True)
    elif qplan == 1:
        dma('q', 1)
        tile_read('q', 0)
        flag()
        phi_tile(0, True)
        stamp(10)
        poll()
        g_issue()
        stamp(11)
        tile_read('q', 1)
        phi_tile(1, True)
    elif qplan == 2:
        flag()
        dma('q', 1, (0, 1))
        tile_read('q', 0)
        phi_tile(0, True)
        stamp(10)
        poll()
        g_issue()
        dma('q', 1, (2, 3))
        stamp(11)
        tile_read('q', 1)
        phi_tile(1, True)
    g_sum()
    stamp(12)
    for x in out_mfma(0, XT):
        a(x)
    interleave(a, out_mfma(1, OM), out_valu(0, XT), [2, 2, 2, 3] + [4] * 14)
    for x in out_valu(1, OM):
        a(x)
    stamp(13)
    if stamps:
        a('s_waitcnt vmcnt(0)')
        stamp(14)
        stamp_flush(15)
    a.label('L_end')
    a('s_endpgm')
    return HEADER % (LDS_TOTAL, NAME, NAME, NAME) + a.text() + FOOTER % NAME


if __name__ == '__main__':
    import argparse
    ap = argparse.ArgumentParser()
    ap.add_argument('-o', default='cdna_kernels/%s.s' % NAME)
    ap.add_argument('--stamps', type=int, nargs='?', const=1, default=0)
    ap.add_argument('--st', default='nt')
    ap.add_argument('--sleep', type=int, default=1)
    ap.add_argument('--rowmap', type=int, default=0)
    ap.add_argument('--qplan', type=int, default=0)
    args = ap.parse_args()
    open(args.o, 'w').write(gen(args.stamps, args.st, args.sleep, args.rowmap, args.qplan))
```
